```python
import torch

def _softmax(x, axis=-1):
    return torch.softmax(x, dim=axis)
def _gelu(x):
    return torch.nn.functional.gelu(x, approximate="tanh")
def _silu(x):
    return torch.nn.functional.silu(x)
def _sigmoid(x):
    return torch.sigmoid(x)
def _layernorm(x, axis=-1, eps=1e-5):
    m = x.mean(dim=axis, keepdim=True)
    v = x.var(dim=axis, keepdim=True, unbiased=False)
    return (x - m) / torch.sqrt(v + eps)
def _scatter_add(tgt, idx, src, axis=0):
    return tgt.clone().index_add_(axis, idx, src)
def _segment_sum(src, seg, n):
    out = torch.zeros((n,) + src.shape[1:], dtype=src.dtype)
    return out.index_add_(0, seg, src)
def _pad(x, pw):
    flat = tuple(v for pair in reversed(pw) for v in pair)
    return torch.nn.functional.pad(x, flat)

kernel_name = 'gated_mix__grouped_kv_mqa__mixer_token_mlp__prompt'

def setup_inputs():

    _w = (lambda a: (lambda t: t.to(torch.bfloat16) if t.is_floating_point() else t)(torch.as_tensor(a)))
    def _A_setup():
        B, S, D, H = 1, 2048, 1024, 32
        Dh = D // H
        return {
            "x": _w((lambda *s: torch.randn(*s, dtype=torch.bfloat16) * 0.05)(B, S, D)),
            "wq": _w((lambda *s: torch.randn(*s, dtype=torch.bfloat16) * 0.8)(D, H * Dh)),
            "wk": _w((lambda *s: torch.randn(*s, dtype=torch.bfloat16) * 0.8)(D, Dh)),
            "wv": _w((lambda *s: torch.randn(*s, dtype=torch.bfloat16) * 0.05)(D, Dh)),
            "wo": _w((lambda *s: torch.randn(*s, dtype=torch.bfloat16) * 0.05)(H * Dh, D)),
        }
    _A_in = _A_setup()

    def _B_setup():
        B, S, D, F = 1, 2048, 1024, 3584
        return {
            "x": _w((lambda *s: torch.randn(*s, dtype=torch.bfloat16) * 0.05)(B, S, D)),
            "w1": _w((lambda *s: torch.randn(*s, dtype=torch.bfloat16) * 0.4)(S, F) * (S ** -0.5)),
            "b1": _w((lambda *s: torch.randn(*s, dtype=torch.bfloat16) * 3.2)(F) * 0.02),
            "w2": _w((lambda *s: torch.randn(*s, dtype=torch.bfloat16) * 0.1)(F, S) * (F ** -0.5)),
            "b2": _w((lambda *s: torch.randn(*s, dtype=torch.bfloat16) * 0.4)(S) * 0.02),
        }
    _B_in = _B_setup()

    return {
        "A_x": _A_in["x"],
        "A_wq": _A_in["wq"],
        "A_wk": _A_in["wk"],
        "A_wv": _A_in["wv"],
        "A_wo": _A_in["wo"],
        "B_x": _B_in["x"],
        "B_w1": _B_in["w1"],
        "B_b1": _B_in["b1"],
        "B_w2": _B_in["w2"],
        "B_b2": _B_in["b2"],
        "gate_w": _w((lambda *s: torch.randn(*s, dtype=torch.bfloat16) * 0.05)(1024) * 16.0),
    }

def reference(A_x, A_wq, A_wk, A_wv, A_wo, B_x, B_w1, B_b1, B_w2, B_b2, gate_w):
    def _A_ref(x, wq, wk, wv, wo):
        B, S, D = x.shape
        H = 32
        Dh = D // H
        q = (lambda x, *d: x.permute(*d))((x @ wq).reshape(B, S, H, Dh), 0, 2, 1, 3)
        k = x @ wk
        v = x @ wv
        scores = torch.einsum("bhqd,bkd->bhqk", q, k) * (Dh ** -0.5)
        p = _softmax(scores, axis=-1)
        o = torch.einsum("bhqk,bkd->bhqd", p, v)
        return (lambda x, *d: x.permute(*d))(o, 0, 2, 1, 3).reshape(B, S, H * Dh) @ wo

    def _B_ref(x, w1, b1, w2, b2):
        B, S, D = x.shape
        h = _layernorm(x, axis=-1)
        u = torch.einsum("bsd,sf->bdf", h, w1) + b1
        u = _gelu(u)
        y = torch.einsum("bdf,fs->bds", u, w2) + b2
        return (lambda x, *d: x.permute(*d))(y, 0, 2, 1)

    x = A_x
    g = _sigmoid((x * gate_w).sum(-1, keepdims=True))
    a = _A_ref(x, A_wq, A_wk, A_wv, A_wo)
    b = _B_ref(x, B_w1, B_b1, B_w2, B_b2)
    return g * a + (1 - g) * b
```

```python
import re

class Asm:
    def __init__(self):
        self.lines = []
    def __call__(self, s):
        for l in s.split("\n"):
            l = l.rstrip()
            if l.strip() == "":
                continue
            self.lines.append(l if (l.startswith(" ") or l.rstrip().endswith(":") or l.startswith(".") or l.startswith(";")) else "    " + l)
    def c(self, s):
        self.lines.append("    ; " + s)
    def label(self, n):
        self.lines.append(n + ":")
    def text(self):
        return "\n".join(self.lines) + "\n"

def vr(b, n=1):
    return f"v{b}" if n == 1 else f"v[{b}:{b+n-1}]"
def sr(b, n=1):
    return f"s{b}" if n == 1 else f"s[{b}:{b+n-1}]"

def interleave(main, side, first=0, last=None, per=None):
    n = len(main)
    if last is None: last = n
    slots = [[] for _ in range(n)]
    m = len(side)
    span = last - first
    for j, s in enumerate(side):
        slots[first + j * span // m].append(s)
    out = []
    for i in range(n):
        out.append(main[i]); out.extend(slots[i])
    return out

_reg = re.compile(r"^(-?)(?:abs\()?\|?([vsa])(?:(\d+)|\[(\d+):(\d+)\])\)?\|?$")
def regs_of(op):
    op = op.strip()
    if op in ("vcc",): return {"vcc"}
    if op in ("exec",): return {"exec"}
    if op == "m0": return {"m0"}
    m = _reg.match(op)
    if not m: return set()
    k = m.group(2)
    if m.group(3) is not None: return {f"{k}{int(m.group(3))}"}
    return {f"{k}{i}" for i in range(int(m.group(4)), int(m.group(5)) + 1)}

TRANS = ("v_exp_", "v_log_", "v_rcp_", "v_rsq_", "v_sqrt_", "v_sin_", "v_cos_")
def parse(line):
    l = line.split(";")[0].strip()
    if not l or l.endswith(":") or l.startswith("."): return None
    parts = l.split(None, 1)
    mn = parts[0]
    ops = []
    if len(parts) > 1:
        depth = 0; cur = ""
        for ch in parts[1]:
            if ch == "[": depth += 1
            if ch == "]": depth -= 1
            if ch == "," and depth == 0: ops.append(cur.strip()); cur = ""
            else: cur += ch
        ops.append(cur.strip())
    mods = ""
    if ops:
        t = ops[-1].split(None, 1)
        ops[-1] = t[0]
        if len(t) > 1: mods = t[1]
    d = dict(mn=mn, ops=ops, mods=mods, w=set(), r=set(), kind="other", text=l)
    if mn.startswith("v_mfma"):
        d["kind"] = "mfma"; d["w"] = regs_of(ops[0]); d["A"] = regs_of(ops[1]); d["B"] = regs_of(ops[2]); d["C"] = regs_of(ops[3])
        d["r"] = d["A"] | d["B"] | d["C"]; d["passes"] = 8 if "32x32" in mn else 4
    elif mn.startswith("v_"):
        d["kind"] = "valu"
        if mn.startswith("v_cmp"):
            d["w"] = regs_of(ops[0]); rs = ops[1:]
            if mn.startswith("v_cmpx"): d["w"] |= {"exec"}
        elif mn.startswith("v_permlane") and "swap" in mn:
            d["w"] = regs_of(ops[0]) | regs_of(ops[1]); rs = ops
        elif "_co_" in mn:
            d["w"] = regs_of(ops[0]) | regs_of(ops[1]); rs = ops[2:]
        else:
            d["w"] = regs_of(ops[0]); rs = ops[1:]
            if mn.startswith("v_fmac") or mn.startswith("v_dot2c") or mn.startswith("v_writelane") or "dpp" in mn or "sdwa" in mn: rs = ops
        for o in rs: d["r"] |= regs_of(o)
        d["trans"] = mn.startswith(TRANS)
        d["dpp"] = "dpp" in mn
    elif mn.startswith("buffer_") or mn.startswith("global_"):
        d["kind"] = "vmem"
        islds = " lds" in (" " + mods) or "load_lds" in mn
        if "load" in mn and not islds:
            d["w"] = regs_of(ops[0]); rs = ops[1:]
        elif "atomic" in mn and "sc0" in mods:
            d["w"] = regs_of(ops[0]); rs = ops
        else:
            rs = ops
        for o in rs: d["r"] |= regs_of(o)
        d["lds"] = islds
        d["widestore"] = ("store" in mn and ("x4" in mn or "x3" in mn))
        if d["widestore"]:
            d["data"] = regs_of(ops[0]) if mn.startswith("buffer_") else regs_of(ops[1])
    elif mn.startswith("ds_"):
        d["kind"] = "ds"
        if "read" in mn or "permute" in mn or "swizzle" in mn or "rtn" in mn:
            d["w"] = regs_of(ops[0]); rs = ops[1:]
        else: rs = ops
        for o in rs: d["r"] |= regs_of(o)
    elif mn.startswith("s_"):
        d["kind"] = "salu"
        if mn in ("s_nop", "s_waitcnt", "s_barrier", "s_endpgm", "s_sleep", "s_setprio") or mn.startswith("s_cbranch") or mn == "s_branch" or mn.startswith("s_cmp"):
            for o in ops: d["r"] |= regs_of(o)
        else:
            d["w"] = regs_of(ops[0]) if ops else set()
            for o in ops[1:]: d["r"] |= regs_of(o)
            if "saveexec" in mn: d["w"] |= {"exec"}
    return d

def states(d):
    if d["mn"] == "s_nop": return int(d["ops"][0], 0) + 1
    return 1

def check_seq(seq, where=""):
    probs = []
    for i, c in enumerate(seq):
        dist = 0
        for j in range(i - 1, max(-1, i - 24), -1):
            p = seq[j]
            need = 0; why = ""
            vw = {x for x in p["w"] if x[0] == "v" and x != "vcc"}
            sw = {x for x in p["w"] if x[0] == "s" or x == "vcc"}
            if p["kind"] == "valu":
                if c["kind"] == "mfma" and vw & c["r"]: need, why = 2, "valu->mfma src"
                if c["kind"] == "mfma" and "exec" in p["w"]: need, why = 4, "exec->mfma"
                if p.get("trans") and c["kind"] == "valu" and not c.get("trans") and vw & c["r"]: need, why = max(need, 1), "trans->valu"
                if c["kind"] == "valu" and c["mn"].startswith("v_permlane") and vw & c["r"]: need, why = 2, "valu->permlane"
                if c["kind"] == "valu" and c.get("dpp") and vw & c["r"]: need, why = 2, "valu->dpp"
                if c["kind"] == "valu" and c.get("dpp") and "exec" in p["w"]: need, why = 5, "exec->dpp"
                if c["kind"] == "valu" and (c["mn"].startswith("v_readlane") or c["mn"].startswith("v_readfirstlane")) and vw & c["r"]: need, why = max(need, 1), "valu->readlane"
                if c["kind"] == "vmem" and sw & c["r"]: need, why = 5, "valu sgpr->vmem"
                if c["kind"] == "valu" and sw & c["r"]: need, why = max(need, 2), "valu sgpr->valu"
                if c["kind"] == "valu" and "vcc" in sw and ("cndmask" in c["mn"]) and "vcc" in c["r"]: need, why = max(need, 2), "vcc->cndmask"
                if "sdwa" in p["mn"] and c["kind"] == "valu" and vw & (c["r"] | c["w"]): need, why = max(need, 1), "sdwa->valu"
            if p["kind"] == "mfma":
                ps = p["passes"]
                big = 12 if ps == 8 else 8
                if c["kind"] == "mfma":
                    if p["w"] & (c["A"] | c["B"]): need, why = big, "mfma D->mfma A/B"
                    elif p["w"] & c["C"]:
                        if not (p["w"] == c["C"] and ps == c["passes"]): need, why = (10 if ps == 8 else 6), "mfma D->mfma C overlap"
                    elif p["w"] & c["w"]:
                        need, why = (10 if ps == 8 else 6), "mfma D->mfma D WAW(conservative)"
                elif c["kind"] in ("valu", "vmem", "ds"):
                    if p["w"] & (c["r"] | c["w"]): need, why = big, "mfma D->valu/mem"
                    elif c["kind"] == "valu" and p["C"] & c["w"]: need, why = (7 if ps == 8 else 3), "mfma C WAR"
            if p["kind"] == "salu" and "m0" in p["w"] and c["kind"] == "vmem" and c.get("lds"): need, why = 1, "m0->dma"
            if p["kind"] == "vmem" and p.get("widestore") and p["data"] & c["w"]:
                need, why = (2 if c["kind"] == "valu" else 1), "store data WAR"
            if need > dist:
                probs.append(f"{where}: [{why}] need {need} have {dist}: '{p['text']}' -> '{c['text']}'")
            dist += states(p)
            if dist >= 20: break
    return probs

def check_text(text):
    lines = text.split("\n")
    ins = []; labels = {}
    for l in lines:
        s = l.split(";")[0].strip()
        if s.endswith(":") and not s.startswith("."):
            labels[s[:-1]] = len(ins); continue
        d = parse(l)
        if d and not d["mn"].startswith("."): ins.append(d)
    probs = []
    seg = []
    for d in ins:
        seg.append(d)
        if d["mn"] in ("s_branch", "s_endpgm"):
            probs += check_seq(seg, "linear"); seg = []
    probs += check_seq(seg, "linear")
    for i, d in enumerate(ins):
        if d["mn"].startswith("s_cbranch") or d["mn"] == "s_branch":
            t = labels.get(d["ops"][0])
            if t is None: continue
            pre = ins[max(0, i - 24):i + 1]
            for k in range(len(pre) - 2, -1, -1):
                if pre[k]["mn"] in ("s_branch", "s_endpgm"): pre = pre[k + 1:]; break
            post = []
            for x in ins[t:t + 24]:
                post.append(x)
                if x["mn"] in ("s_branch", "s_endpgm"): break
            probs += check_seq(pre + post, f"edge->{d['ops'][0]}")
    return sorted(set(probs))
```

```python
from common import *
from gemm import lane_ids, slot_advance

QA, QB, KF, VF, PA, PB, ONES, LA, LB = 16, 24, 32, 40, 48, 56, 64, 68, 72
SA, SB, OA, OB, NMA, NMB = 80, 96, 112, 128, 144, 160
QSET = [176, 200]
VG = 76
VKN = 77
BOUND_T = 40.0
M32 = "v_mfma_f32_32x32x16_bf16"
M16 = "v_mfma_f32_16x16x32_bf16"

def attn_body(a, pfx, st_mod=""):
    R = 4; NS = 16; SLOT = 32768
    a("s_cmp_ge_u32 s20, 4")
    a("s_cselect_b32 s8, s6, s4")
    a("s_cselect_b32 s9, s7, s5")
    a(f"s_cselect_b32 s10, 0x{SZ['wq']:x}, 0x{SZ['x']:x}" if False else "s_mov_b32 s10, 0x200000")
    a("s_cselect_b32 s10, s10, 0x400000")
    a("s_and_b32 s9, s9, 0xffff")
    a("s_mov_b32 s11, 0x20000")
    a("v_lshlrev_b32 v4, 4, v1              ; lane*16")
    a("s_lshl_b32 s27, s20, 12")
    a(f"s_add_u32 s28, s27, {WS_KV}")
    a("s_add_u32 m0, s27, 131072")
    a(f"s_mov_b32 s29, {WS_KN}")
    for i in range(4): a(f"buffer_load_dwordx4 v4, s[12:15], s28 offen offset:{i*1024} lds")
    a("v_lshlrev_b32 v5, 3, v1")
    a(f"buffer_load_dwordx2 v[78:79], v5, s[12:15], s29 offen")
    a("s_and_b32 s30, s20, 3                ; st")
    a("s_lshr_b32 s31, s20, 2               ; hp")
    a("s_lshl_b32 s32, s22, 7")
    a("s_lshl_b32 s33, s30, 5")
    a("s_add_u32 s32, s32, s33")
    a("s_lshl_b32 s33, s32, 2")
    a(f"s_add_u32 s33, s33, {WS_G}")
    a("v_and_b32 v5, 31, v1                 ; q")
    a("v_lshlrev_b32 v6, 2, v5")
    a(f"buffer_load_dword v{VG}, v6, s[12:15], s33 offen")
    a("v_lshrrev_b32 v6, 3, v1              ; l/8")
    a("v_and_b32 v7, 7, v1")
    a("s_cmp_ge_u32 s20, 4")
    a(f"s_cbranch_scc1 {pfx}_WQA")
    a("v_xor_b32 v7, v7, v3")
    a("s_lshl_b32 s34, s22, 7")
    a("s_lshl_b32 s35, s20, 5")
    a("s_add_u32 s34, s34, s35")
    a("v_add_u32 v6, s34, v6")
    a("v_lshlrev_b32 v6, 11, v6")
    a("v_lshl_add_u32 v12, v7, 4, v6")
    a("v_xor_b32 v7, 4, v7")
    a("v_lshl_add_u32 v13, v7, 4, v6")
    a("s_movk_i32 s36, 128")
    a(f"s_branch {pfx}_AJ")
    a.label(f"{pfx}_WQA")
    a("v_and_b32 v12, 2, v6")
    a("v_lshlrev_b32 v12, 1, v12")
    a("v_xor_b32 v7, v7, v12")
    a("s_and_b32 s34, s20, 1")
    a("s_lshl_b32 s34, s34, 5")
    a("v_add_u32 v6, s34, v6")
    a("v_lshlrev_b32 v6, 11, v6")
    a("s_lshr_b32 s34, s20, 1")
    a("s_and_b32 s34, s34, 1")
    a("s_lshl_b32 s34, s34, 7")
    a("s_lshl_b32 s35, s21, 8")
    a("s_add_u32 s34, s34, s35")
    a("v_add_u32 v6, s34, v6")
    a("v_lshl_add_u32 v12, v7, 4, v6")
    a("v_mov_b32 v13, v12")
    a(f"s_mov_b32 s36, {64*2048}")
    a.label(f"{pfx}_AJ")
    for i in range(4): a(f"v_add_u32 v{8+i}, {i*(8*2048-1024)}, v{12 + (i&1)}")
    a("s_mov_b32 s24, 0")
    a("s_mov_b32 s25, 0                     ; soffset")
    def issue_list():
        o = ["s_add_u32 m0, s24, s27", f"s_add_u32 s24, s24, {SLOT}"]
        for i in range(4): o.append(f"buffer_load_dwordx4 v{8+i}, s[8:11], s25 offen offset:{i*1024} lds")
        o += ["s_add_u32 s25, s25, s36", f"s_and_b32 s24, s24, {SLOT*R-1}"]
        return o
    for _ in range(R):
        for x in issue_list(): a(x)
    XB, WB, XA, WA = 224, 228, 230, 234
    a("s_lshl_b32 s34, s30, 5")
    a("v_add_u32 v6, s34, v5")
    a("v_lshrrev_b32 v7, 1, v6")
    a("v_and_b32 v7, 7, v7")
    a("v_lshrrev_b32 v12, 5, v1             ; h")
    a("v_xor_b32 v7, v7, v12")
    a("v_lshlrev_b32 v6, 7, v6")
    a("v_lshl_add_u32 v6, v7, 4, v6")
    for t in range(4): a(f"v_xor_b32 v{XB+t}, {t*32}, v6")
    a("v_lshrrev_b32 v6, 2, v2              ; r")
    a("v_lshl_add_u32 v7, v12, 3, v6")
    a("v_lshlrev_b32 v7, 7, v7")
    a("v_and_b32 v6, 2, v6")
    a("v_and_b32 v13, 1, v3                 ; jh")
    a("v_or_b32 v6, v6, v13")
    a("v_lshl_add_u32 v7, v6, 5, v7")
    a("v_and_b32 v6, 3, v1")
    a("v_lshl_add_u32 v7, v6, 3, v7")
    a("s_lshl_b32 s34, s31, 13")
    a("s_add_u32 s34, s34, 16384")
    a(f"v_add_u32 v{WB}, s34, v7")
    a(f"v_xor_b32 v{WB+1}, 64, v{WB}")
    for i in range(6): a(f"v_mov_b32 v{XA+i}, v{XB+i}")
    for r in range(32): a(f"v_mov_b32 v{SA+r}, 0")
    a("s_mov_b32 s26, 0")
    def reads(st, half):
        b = QSET[st]; o = []
        for tt in range(2):
            t = 2 * half + tt
            o.append(f"ds_read_b128 {vr(b+4*tt,4)}, v{XA+t}")
            for e in range(2):
                w = b + 8 + (tt * 2 + e) * 4
                o.append(f"ds_read_b64_tr_b16 {vr(w,2)}, v{WA+e} offset:{t*2048}")
                o.append(f"ds_read_b64_tr_b16 {vr(w+2,2)}, v{WA+e} offset:{t*2048+512}")
        return o
    def mf(st):
        b = QSET[st]; o = []
        for tt in range(2):
            for e in range(2):
                acc = SA if e == 0 else SB
                o.append(f"{M32} {vr(acc,16)}, {vr(b+8+(tt*2+e)*4,4)}, {vr(b+4*tt,4)}, {vr(acc,16)}")
        return o
    upd = [f"s_add_u32 s26, s26, {SLOT}", f"s_and_b32 s26, s26, {SLOT*R-1}"] + [f"v_add_u32 v{XA+i}, s26, v{XB+i}" for i in range(6)]
    def stage(vm, dma, last=False):
        for x in interleave(mf(0), reads(1, 1) + ([] if last else upd), 0, 4): a(x)
        if last:
            a("s_waitcnt lgkmcnt(0)")
            a("s_barrier")
            return
        a(f"s_waitcnt vmcnt({vm}) lgkmcnt(0)")
        a("s_barrier")
        for x in interleave(mf(1), reads(0, 0) + (issue_list() if dma else []), 0, 4): a(x)
        a("s_waitcnt lgkmcnt(0)")
    n = 4
    a(f"s_waitcnt vmcnt({(R-1)*n})")
    a("s_barrier")
    for x in reads(0, 0): a(x)
    a(f"s_mov_b32 s23, {NS-R}")
    a("s_waitcnt lgkmcnt(0)")
    a.label(f"{pfx}_QL")
    stage((R-2)*n, True)
    a("s_sub_u32 s23, s23, 1")
    a("s_cmp_lg_u32 s23, 0")
    a(f"s_cbranch_scc1 {pfx}_QL")
    for i in range(NS - R, NS - 1):
        stage(((NS - 1) - (i + 1)) * n, False)
    stage(0, False, last=True)
    a("s_lshl_b32 s27, s20, 11              ; w*2048")
    a(f"s_add_u32 s28, s27, {WS_KV + 2*16384}")
    a("s_mov_b32 s24, s27")
    m1 = mf(1)
    for c in range(8):
        a("s_mov_b32 m0, s24")
        if c < 4: a(m1[c])
        else: a("s_nop 0")
        a("buffer_load_dwordx4 v4, s[12:15], s28 offen lds")
        a("buffer_load_dwordx4 v4, s[12:15], s28 offen offset:1024 lds")
        a("s_add_u32 s24, s24, 16384")
        a("s_add_u32 s28, s28, 16384")
    a("v_add_u32 v5, 131072, v4")
    a("v_add_u32 v6, 147456, v4")
    a(f"ds_read_b128 {vr(KF,4)}, v5")
    a(f"ds_read_b128 {vr(KF+4,4)}, v5 offset:1024")
    a(f"ds_read_b128 {vr(VF,4)}, v5 offset:2048")
    a("v_max_f32 v78, v78, v79")
    wave_reduce(a, [78], op="v_max_f32")
    a("s_nop 0")
    a("v_readlane_b32 s37, v78, 63")
    for r in range(16):
        a(f"v_mov_b32 v{OA+r}, 0"); a(f"v_mov_b32 v{OB+r}, 0")
    for r in range(4):
        a(f"v_mov_b32 v{LA+r}, 0"); a(f"v_mov_b32 v{LB+r}, 0"); a(f"v_mov_b32 v{PB+4+r}, 0"); a(f"v_mov_b32 v{VF+4+r}, 0")
    a("v_lshrrev_b32 v7, 2, v2")
    a("v_xor_b32 v7, v7, v3")
    a("v_and_b32 v7, 1, v7")
    a("v_and_b32 v12, 3, v2")
    a("v_or_b32 v7, v7, v12")
    a("v_cmp_eq_u32 vcc, 0, v7")
    a("v_mov_b32 v12, 0x3f803f80")
    a("s_nop 0")
    a(f"v_cndmask_b32 v{ONES}, 0, v12, vcc")
    for r in range(1, 4): a(f"v_mov_b32 v{ONES+r}, v{ONES}")
    cq = LOG2E / (DH ** 0.5)
    a(f"s_mov_b32 s34, {fhex(cq)}")
    for (Sx, Qx, nr) in ((SA, QA, 12), (SB, QB, 13)):
        for r in range(16): a(f"v_mul_f32 v{Sx+r}, s34, v{Sx+r}")
        a(f"v_mul_f32 v{nr}, v{Sx}, v{Sx}")
        for r in range(1, 16): a(f"v_fmac_f32 v{nr}, v{Sx+r}, v{Sx+r}")
        for i in range(8): a(f"v_cvt_pk_bf16_f32 v{Qx+i}, v{Sx+2*i}, v{Sx+2*i+1}")
    a("v_mov_b32 v14, v12")
    a("v_mov_b32 v15, v13")
    a("s_nop 1")
    a("v_permlane32_swap_b32 v12, v14")
    a("v_permlane32_swap_b32 v13, v15")
    a("v_add_f32 v12, v12, v14")
    a("v_add_f32 v13, v13, v15")
    a(f"v_mov_b32 v14, {fhex(1.03)}")
    a("v_mul_f32 v14, s37, v14")
    a("v_mul_f32 v12, v12, v14")
    a("v_mul_f32 v13, v13, v14")
    a("v_sqrt_f32 v12, v12")
    a("v_sqrt_f32 v13, v13")
    a(f"v_mov_b32 v14, {fhex(BOUND_T)}")
    a("v_max_f32 v15, v12, v13")
    a("v_cmp_nle_f32 vcc, v15, v14")
    a("s_waitcnt lgkmcnt(0)")
    a(f"s_cbranch_vccz {pfx}_FAST")
    a(f"s_mov_b32 s34, {WS_KV}")
    a("v_mov_b32 v12, 0xff800000")
    a("v_mov_b32 v13, 0xff800000")
    a("s_mov_b32 s23, 64")
    a.label(f"{pfx}_MX")
    a(f"buffer_load_dwordx4 {vr(PA,4)}, v4, s[12:15], s34 offen")
    a(f"buffer_load_dwordx4 {vr(PA+4,4)}, v4, s[12:15], s34 offen offset:1024")
    a("s_add_u32 s34, s34, 4096")
    a("s_waitcnt vmcnt(0)")
    a(f"{M32} {vr(SA,16)}, {vr(PA,4)}, {vr(QA,4)}, 0")
    a(f"{M32} {vr(SB,16)}, {vr(PA,4)}, {vr(QB,4)}, 0")
    a(f"{M32} {vr(SA,16)}, {vr(PA+4,4)}, {vr(QA+4,4)}, {vr(SA,16)}")
    a(f"{M32} {vr(SB,16)}, {vr(PA+4,4)}, {vr(QB+4,4)}, {vr(SB,16)}")
    a("s_nop 15")
    for r in range(0, 16, 2): a(f"v_max3_f32 v12, v12, v{SA+r}, v{SA+r+1}")
    for r in range(0, 16, 2): a(f"v_max3_f32 v13, v13, v{SB+r}, v{SB+r+1}")
    a("s_sub_u32 s23, s23, 1")
    a("s_cmp_lg_u32 s23, 0")
    a(f"s_cbranch_scc1 {pfx}_MX")
    a("v_mov_b32 v14, v12")
    a("v_mov_b32 v15, v13")
    a("s_nop 1")
    a("v_permlane32_swap_b32 v12, v14")
    a("v_permlane32_swap_b32 v13, v15")
    a("v_max_f32 v12, v12, v14")
    a("v_max_f32 v13, v13, v15")
    a.label(f"{pfx}_FAST")
    for r in range(16):
        a(f"v_sub_f32 v{NMA+r}, 0, v12"); a(f"v_sub_f32 v{NMB+r}, 0, v13")
    a("s_nop 1")
    a(f"{M32} {vr(SA,16)}, {vr(KF,4)}, {vr(QA,4)}, {vr(NMA,16)}")
    a(f"{M32} {vr(SA,16)}, {vr(KF+4,4)}, {vr(QA+4,4)}, {vr(SA,16)}")
    a("s_mov_b32 s23, 0                     ; chunk c")
    a("s_mov_b32 s26, 147456")
    a("s_nop 8")
    def step(cur, tile):
        if cur == 'A':
            S_, P_, O_, L_ = SA, PA, OA, LA
            Sn, Qn, NMn, Po, Oo, Lo = SB, QB, NMB, PB, OB, LB
        else:
            S_, P_, O_, L_ = SB, PB, OB, LB
            Sn, Qn, NMn, Po, Oo, Lo = SA, QA, NMA, PA, OA, LA
        e = lambda r: a(f"v_exp_f32 v{S_+r}, v{S_+r}")
        c = lambda i: a(f"v_cvt_pk_bf16_f32 v{P_+i}, v{S_+2*i}, v{S_+2*i+1}")
        nreg, noff = ("v5", (tile + 1) * 4096) if tile < 3 else ("v6", 0)
        if cur == 'B': a("s_waitcnt lgkmcnt(1)")
        a(f"{M32} {vr(Sn,16)}, {vr(KF,4)}, {vr(Qn,4)}, {vr(NMn,16)}")
        e(0); e(1); e(2); e(3)
        a(f"{M32} {vr(Sn,16)}, {vr(KF+4,4)}, {vr(Qn+4,4)}, {vr(Sn,16)}")
        if cur == 'A':
            a(f"ds_read_b128 {vr(KF,4)}, {nreg} offset:{noff}")
            a(f"ds_read_b128 {vr(KF+4,4)}, {nreg} offset:{noff+1024}")
        c(0); c(1); e(4); e(5); e(6)
        if cur == 'B': a("s_waitcnt lgkmcnt(0)")
        a(f"{M32} {vr(Oo,16)}, {vr(VF+4,4)}, {vr(Po+4,4)}, {vr(Oo,16)}")
        if cur == 'A':
            a(f"ds_read_b128 {vr(VF+4,4)}, v5 offset:{tile*4096+3072}")
        e(7); c(2); c(3); e(8); e(9)
        a(f"{M16} {vr(Lo,4)}, {vr(ONES,4)}, {vr(Po+4,4)}, {vr(Lo,4)}")
        e(10); e(11)
        if cur == 'A': a("s_waitcnt lgkmcnt(3)")
        a(f"{M32} {vr(O_,16)}, {vr(VF,4)}, {vr(P_,4)}, {vr(O_,16)}")
        if cur == 'B':
            a(f"ds_read_b128 {vr(VF,4)}, {nreg} offset:{noff+2048}")
        c(4); c(5); e(12); e(13); e(14)
        a(f"{M16} {vr(L_,4)}, {vr(ONES,4)}, {vr(P_,4)}, {vr(L_,4)}")
        e(15); c(6); c(7)
    a(".p2align 6")
    a.label(f"{pfx}_ML")
    for tile in range(3):
        step('A', tile); step('B', tile)
    a("s_cmp_ge_u32 s23, 8")
    a(f"s_cbranch_scc1 {pfx}_NB")
    a("s_cmp_eq_u32 s23, 7")
    a(f"s_cbranch_scc1 {pfx}_LB")
    a("s_waitcnt vmcnt(14)")
    a("s_barrier")
    a("s_cmp_eq_u32 s23, 0")
    a(f"s_cbranch_scc1 {pfx}_NB")
    a("s_mov_b32 m0, s24")
    a("s_add_u32 s24, s24, 16384")
    a("buffer_load_dwordx4 v4, s[12:15], s28 offen lds")
    a("buffer_load_dwordx4 v4, s[12:15], s28 offen offset:1024 lds")
    a("s_add_u32 s28, s28, 16384")
    a("s_cmp_ge_u32 s24, 163840")
    a("s_cselect_b32 s24, s27, s24")
    a(f"s_branch {pfx}_NB")
    a.label(f"{pfx}_LB")
    a("s_waitcnt vmcnt(0)")
    a("s_barrier")
    a.label(f"{pfx}_NB")
    step('A', 3); step('B', 3)
    a("s_add_u32 s26, s26, 16384")
    a("s_cmp_ge_u32 s26, 163840")
    a("s_cselect_b32 s26, 0, s26")
    a("v_mov_b32 v5, v6")
    a("v_add_u32 v6, s26, v4")
    a("s_add_u32 s23, s23, 1")
    a("s_cmp_lt_u32 s23, 16")
    a(f"s_cbranch_scc1 {pfx}_ML")
    a(f"{M32} {vr(OB,16)}, {vr(VF+4,4)}, {vr(PB+4,4)}, {vr(OB,16)}")
    a(f"{M16} {vr(LB,4)}, {vr(ONES,4)}, {vr(PB+4,4)}, {vr(LB,4)}")
    a("s_lshl_b32 s34, s22, 18")
    a("s_lshl_b32 s35, s21, 2")
    a("s_lshl_b32 s33, s31, 1")
    a("s_add_u32 s35, s35, s33")
    a("s_lshl_b32 s35, s35, 13")
    a("s_add_u32 s34, s34, s35")
    a("s_lshl_b32 s35, s30, 11              ; 2st*1024")
    a("s_add_u32 s34, s34, s35")
    a(f"s_add_u32 s34, s34, {WS_O}")
    a("s_add_u32 s35, s34, 8192")
    a("v_and_b32 v7, 1, v3")
    a("v_lshlrev_b32 v7, 10, v7")
    a("v_lshrrev_b32 v12, 1, v3")
    a("v_lshl_add_u32 v7, v12, 8, v7")
    a("v_lshl_add_u32 v7, v2, 4, v7")
    a("s_waitcnt lgkmcnt(0)")
    for (O_, L_, P_, so) in ((OA, LA, PA, 34), (OB, LB, PB, 35)):
        a(f"v_rcp_f32 v12, v{L_}")
        a("s_nop 0")
        a(f"v_mul_f32 v12, v12, v{VG}")
        for r in range(16): a(f"v_mul_f32 v{O_+r}, v{O_+r}, v12")
        for p in range(2):
            a(f"v_cvt_pk_bf16_f32 v{P_+4*p}, v{O_+4*p}, v{O_+4*p+1}")
            a(f"v_cvt_pk_bf16_f32 v{P_+4*p+1}, v{O_+4*p+2}, v{O_+4*p+3}")
            a(f"v_cvt_pk_bf16_f32 v{P_+4*p+2}, v{O_+8+4*p}, v{O_+8+4*p+1}")
            a(f"v_cvt_pk_bf16_f32 v{P_+4*p+3}, v{O_+8+4*p+2}, v{O_+8+4*p+3}")
            a(f"buffer_store_dwordx4 {vr(P_+4*p,4)}, v7, s[12:15], s{so} offen offset:{p*512}{st_mod}")

def gen_attn(a, name="attn_kernel"):
    kernel_begin(a, name)
    a("s_cmp_ge_u32 s2, 128")
    a("s_cbranch_scc1 AT_END")
    a(f"s_load_dwordx2 s[4:5], s[0:1], {KA['x']}")
    a(f"s_load_dwordx2 s[6:7], s[0:1], {KA['wq']}")
    a(f"s_load_dwordx2 s[40:41], s[0:1], {KA['ws']}")
    lane_ids(a)
    a("s_and_b32 s27, s2, 7")
    a("s_lshr_b32 s28, s2, 3")
    a("s_and_b32 s21, s27, 1")
    a("s_lshl_b32 s21, s21, 2")
    a("s_and_b32 s29, s28, 3")
    a("s_add_u32 s21, s21, s29")
    a("s_lshr_b32 s22, s27, 1")
    a("s_lshl_b32 s22, s22, 2")
    a("s_lshr_b32 s29, s28, 2")
    a("s_add_u32 s22, s22, s29")
    a("s_waitcnt lgkmcnt(0)")
    srd(a, 12, 40, SZ['ws'])
    attn_body(a, "AT")
    a.label("AT_END")
    a("s_endpgm")
    return kernel_desc(name, 256)
```

```python
from asmlib import *

S, D, H, DH, F = 2048, 1024, 32, 32, 3584
KA = dict(x=0, wq=8, wk=16, wv=24, wo=32, bx=40, w1=48, b1=56, w2=64, b2=72, gw=80, out=88, dbg=96, ws=104)
SZ = dict(x=S*D*2, wq=D*D*2, wk=D*DH*2, wv=D*DH*2, wo=D*D*2, w1=S*F*2, b1=F*2, w2=F*S*2, b2=S*2, gw=D*2, out=S*D*2, dbg=256, ws=32 << 20)
WS_HT = 0
WS_U = 4 << 20
WS_O = 12 << 20
WS_KV = 16 << 20
WS_G = WS_KV + (256 << 10)
WS_KN = WS_G + 8192

LOG2E = 1.4426950408889634
import struct
def f2u(x): return struct.unpack("<I", struct.pack("<f", x))[0]
def fhex(x): return "0x%08x" % f2u(x)

def srd(a, d, p, size):
    a(f"s_mov_b32 s{d}, s{p}")
    a(f"s_and_b32 s{d+1}, s{p+1}, 0xffff")
    a(f"s_mov_b32 s{d+2}, 0x{size:x}")
    a(f"s_mov_b32 s{d+3}, 0x20000")

def kernel_begin(a, name):
    a(f".globl {name}")
    a(".p2align 8")
    a(f".type {name},@function")
    a.label(name)

def kernel_desc(name, nv, ns=96):
    acc = (nv + 3) // 4 * 4
    return f""".amdhsa_kernel {name}
  .amdhsa_next_free_vgpr {nv}
  .amdhsa_next_free_sgpr {ns}
  .amdhsa_accum_offset {acc}
  .amdhsa_group_segment_fixed_size 0
  .amdhsa_kernarg_size 112
  .amdhsa_user_sgpr_count 2
  .amdhsa_user_sgpr_kernarg_segment_ptr 1
  .amdhsa_system_sgpr_workgroup_id_x 1
.end_amdhsa_kernel
"""

def wave_reduce(a, regs, op="v_add_f32"):
    steps = ["row_shr:1", "row_shr:2", "row_shr:4", "row_shr:8", "row_bcast:15 row_mask:0xa", "row_bcast:31 row_mask:0xc"]
    pad = max(0, 2 - (len(regs) - 1))
    a("s_nop 1")
    for st in steps:
        for r in regs:
            m = st if "row_mask" in st else st + " row_mask:0xf"
            a(f"{op}_dpp v{r}, v{r}, v{r} {m} bank_mask:0xf")
        if pad: a(f"s_nop {pad-1}")
```

```python
from common import *

def lane_ids(a):
    a("v_lshrrev_b32 v2, 6, v0")
    a("v_and_b32 v1, 63, v0")
    a("v_readfirstlane_b32 s20, v2")
    a("v_and_b32 v2, 15, v1")
    a("v_lshrrev_b32 v3, 4, v1")

def slot_advance(sreg, stride, nslots):
    return [f"s_add_u32 s{sreg}, s{sreg}, {stride}",
            f"s_cmp_eq_u32 s{sreg}, {stride*nslots}",
            f"s_cselect_b32 s{sreg}, 0, s{sreg}"]

M1_SLOT = 49152
M1_R = 3
M1_NS = 32
M1_ACC = 128
M1_SET = [(16, 44), (60, 88)]
def m1_acc(i, j): return M1_ACC + (i * 4 + j) * 4

def mlp1_loader(a, pfx):
    a("s_sub_u32 s27, s20, 4")
    a("v_lshrrev_b32 v4, 3, v1            ; l/8")
    a("v_and_b32 v5, 7, v1                ; l%8")
    a("v_and_b32 v6, 2, v4                ; ((row>>1)&1)<<1")
    a("v_xor_b32 v5, v5, v6")
    a("s_movk_i32 s28, 7168")
    a("v_mul_lo_u32 v4, v4, s28")
    a("s_mul_i32 s28, s22, 448")
    a("s_and_b32 s29, s22, 1")
    a("s_lshl_b32 s29, s29, 6")
    a("s_sub_u32 s28, s28, s29")
    a("s_lshl_b32 s29, s27, 7")
    a("s_add_u32 s28, s28, s29")
    a("v_add_u32 v4, s28, v4")
    a("v_lshl_add_u32 v6, v5, 4, v4       ; even i")
    a("v_xor_b32 v5, 4, v5")
    a("v_lshl_add_u32 v5, v5, 4, v4       ; odd i")
    for i in range(8):
        a(f"v_add_u32 v{8+i}, {i*8*7168 - (i%4)*1024}, v{6 if i%2==0 else 5}")
    a("s_lshl_b32 s28, s21, 19")
    a("s_lshl_b32 s29, s27, 12")
    a("s_add_u32 s28, s28, s29")
    a(f"s_add_u32 s28, s28, {WS_HT}")
    a("v_lshl_add_u32 v7, v1, 4, s28")
    a("s_lshl_b32 s30, s27, 13")
    a("s_add_u32 s31, s29, 32768")
    a("s_mov_b32 s24, 0")
    a("s_mov_b32 s25, 0")
    a("s_mov_b32 s26, 0")
    def issue():
        a("s_add_u32 m0, s24, s30")
        a("s_add_u32 s32, s24, s30")
        for i in range(4): a(f"buffer_load_dwordx4 v{8+i}, s[8:11], s25 offen offset:{i*1024} lds")
        a("s_add_u32 m0, s32, 4096")
        a("s_nop 0")
        for i in range(4, 8): a(f"buffer_load_dwordx4 v{8+i}, s[8:11], s25 offen offset:{(i%4)*1024} lds")
        a("s_add_u32 m0, s24, s31")
        a(f"s_add_u32 s25, s25, {64*7168}")
        for i in range(4): a(f"buffer_load_dwordx4 v7, s[12:15], s26 offen offset:{i*1024} lds")
        a("s_add_u32 s26, s26, 16384")
        for x in slot_advance(24, M1_SLOT, M1_R): a(x)
    n = 12
    for _ in range(M1_R): issue()
    a(f"s_waitcnt vmcnt({(M1_R-1)*n})")
    a("s_barrier")
    a(f"s_mov_b32 s23, {M1_NS - M1_R}")
    a.label(f"{pfx}_LDL")
    a(f"s_waitcnt vmcnt({(M1_R-2)*n})")
    a("s_barrier")
    issue()
    a("s_sub_u32 s23, s23, 1")
    a("s_cmp_lg_u32 s23, 0")
    a(f"s_cbranch_scc1 {pfx}_LDL")
    for i in range(M1_NS - M1_R, M1_NS - 1):
        left = (M1_NS - 1) - (i + 1)
        a(f"s_waitcnt vmcnt({left*n})")
        a("s_barrier")

def mlp1_compute(a, pfx):
    a("s_lshr_b32 s27, s20, 1             ; wr")
    a("s_and_b32 s28, s20, 1              ; wc")
    a("s_mul_i32 s29, s22, 14")
    a("s_lshl_b32 s30, s27, 3")
    a("s_add_u32 s30, s30, s29")
    a("s_add_u32 s31, s29, 6")
    a("s_add_u32 s31, s31, s27")
    a("s_lshl_b32 s32, s30, 5")
    a("s_lshl_b32 s33, s31, 5")
    a("v_lshlrev_b32 v4, 3, v3")
    for i in range(6):
        a(f"buffer_load_dwordx2 {vr(16+2*i,2)}, v4, s[16:19], s32 offen offset:{i*32}")
    a(f"buffer_load_dwordx2 {vr(28,2)}, v4, s[16:19], s33 offen")
    a("v_lshrrev_b32 v5, 2, v2            ; r")
    a("v_lshl_add_u32 v6, v3, 3, v5       ; 8g+r")
    a("v_lshlrev_b32 v6, 7, v6")
    a("v_and_b32 v7, 3, v1")
    a("v_lshl_add_u32 v6, v7, 3, v6       ; + c*8")
    a("v_lshrrev_b32 v5, 1, v5")
    a("v_and_b32 v7, 1, v3")
    a("v_lshl_add_u32 v5, v7, 1, v5       ; f")
    a("v_lshl_add_u32 v6, v5, 5, v6")
    a("s_and_b32 s34, s22, 1")
    a("s_lshl_b32 s34, s34, 1")
    a("s_lshl_b32 s35, s27, 3")
    a("s_add_u32 s35, s35, s34            ; jj0")
    a("s_add_u32 s36, s34, 6")
    a("s_add_u32 s36, s36, s27            ; jj6")
    for i in range(5):
        if i < 4: a(f"s_add_u32 s37, s35, {i}")
        else: a("s_mov_b32 s37, s36")
        a("s_and_b32 s38, s37, 3")
        a("s_lshl_b32 s38, s38, 5")
        a("s_lshr_b32 s37, s37, 2")
        a("s_lshl_b32 s37, s37, 13")
        a(f"v_xor_b32 v{10+i}, s38, v6")
        a(f"v_add_u32 v{10+i}, s37, v{10+i}")
    a("s_lshl_b32 s37, s28, 12")
    a("s_add_u32 s37, s37, 32768")
    a("v_lshl_add_u32 v15, v1, 4, s37")
    a("s_waitcnt vmcnt(0)")
    for i in range(7):
        b = m1_acc(i, 0)
        a(f"v_lshlrev_b32 v{b}, 16, v{16+2*i}")
        a(f"v_and_b32 v{b+1}, 0xffff0000, v{16+2*i}")
        a(f"v_lshlrev_b32 v{b+2}, 16, v{17+2*i}")
        a(f"v_and_b32 v{b+3}, 0xffff0000, v{17+2*i}")
        for j in range(1, 4):
            for r in range(4): a(f"v_mov_b32 v{m1_acc(i,j)+r}, v{b+r}")
    for i in range(6): a(f"v_mov_b32 v{4+i}, v{10+i}")
    a("s_mov_b32 s24, 0")
    def reads(st, t):
        A, B = M1_SET[st]
        o = []
        for j in range(4):
            o.append(f"ds_read_b128 {vr(B+4*j,4)}, v9 offset:{t*8192 + j*1024}")
        for i in range(7):
            reg = 4 + (i % 4) if i < 6 else 8
            off = (8192 if i in (4, 5) else 0) + t * 4096
            o.append(f"ds_read_b64_tr_b16 {vr(A+4*i,2)}, v{reg} offset:{off}")
            o.append(f"ds_read_b64_tr_b16 {vr(A+4*i+2,2)}, v{reg} offset:{off+512}")
        return o
    def mfmas(st):
        A, B = M1_SET[st]
        return [f"v_mfma_f32_16x16x32_bf16 {vr(m1_acc(i,j),4)}, {vr(A+4*i,4)}, {vr(B+4*j,4)}, {vr(m1_acc(i,j),4)}"
                for i in range(7) for j in range(4)]
    upd = slot_advance(24, M1_SLOT, M1_R) + [f"v_add_u32 v{4+i}, s24, v{10+i}" for i in range(6)]
    def stage(last=False):
        side = reads(1, 1)
        seq = interleave(mfmas(0), side + ([] if last else upd), 0, 27)
        for x in seq: a(x)
        a("s_waitcnt lgkmcnt(0)")
        if not last:
            a("s_barrier")
            seq = interleave(mfmas(1), reads(0, 0), 0, 20)
        else:
            seq = mfmas(1)
        for x in seq: a(x)
        if not last: a("s_waitcnt lgkmcnt(0)")
    a("s_barrier")
    for x in reads(0, 0): a(x)
    a(f"s_mov_b32 s23, {(M1_NS-2)//2}")
    a("s_waitcnt lgkmcnt(0)")
    a(".p2align 6")
    a.label(f"{pfx}_CL")
    stage(); stage()
    a("s_sub_u32 s23, s23, 1")
    a("s_cmp_lg_u32 s23, 0")
    a(f"s_cbranch_scc1 {pfx}_CL")
    stage(); stage(last=True)

def mlp1_epilogue(a, pfx, st_mod=""):
    c1 = -2.0 * 0.7978845608028654 * LOG2E
    c2 = c1 * 0.044715
    a(f"v_mov_b32 v4, {fhex(c1)}")
    a(f"v_mov_b32 v5, {fhex(c1)}")
    a(f"v_mov_b32 v6, {fhex(c2)}")
    a(f"v_mov_b32 v7, {fhex(c2)}")
    a(f"s_mul_i32 s32, s21, {112*8192}")
    a("s_lshl_b32 s33, s28, 12")
    a("s_add_u32 s32, s32, s33")
    a(f"s_add_u32 s32, s32, {WS_U}")
    a("s_lshr_b32 s33, s30, 1")
    a("s_lshl_b32 s33, s33, 13")
    a("s_add_u32 s33, s33, s32")
    a("s_lshr_b32 s34, s31, 1")
    a("s_lshl_b32 s34, s34, 13")
    a("s_add_u32 s34, s34, s32")
    a("s_lshl_b32 s35, s27, 3")
    a("s_add_u32 s34, s34, s35")
    a("v_lshlrev_b32 v8, 4, v1")
    a("s_nop 4")
    T = 16
    def gelu_block(accs, tb, ob):
        n = len(accs)
        pr = [(accs[q] + 2 * h, tb + 4 * q + 2 * h) for q in range(n) for h in range(2)]
        for u, t in pr: a(f"v_pk_mul_f32 {vr(t,2)}, {vr(u,2)}, {vr(u,2)}")
        for u, t in pr: a(f"v_pk_fma_f32 {vr(t,2)}, {vr(t,2)}, v[6:7], v[4:5]")
        for u, t in pr: a(f"v_pk_mul_f32 {vr(t,2)}, {vr(t,2)}, {vr(u,2)}")
        for u, t in pr:
            a(f"v_exp_f32 v{t}, v{t}"); a(f"v_exp_f32 v{t+1}, v{t+1}")
        for u, t in pr: a(f"v_pk_add_f32 {vr(t,2)}, {vr(t,2)}, 1.0 op_sel_hi:[1,0]")
        for u, t in pr:
            a(f"v_rcp_f32 v{t}, v{t}"); a(f"v_rcp_f32 v{t+1}, v{t+1}")
        for u, t in pr: a(f"v_pk_mul_f32 {vr(t,2)}, {vr(t,2)}, {vr(u,2)}")
        for k, (u, t) in enumerate(pr): a(f"v_cvt_pk_bf16_f32 v{ob+k}, v{t}, v{t+1}")
    blk = 0
    for p in range(3):
        for j in range(0, 4, 2):
            ob = 48 + (blk % 4) * 8
            gelu_block([m1_acc(2*p, j), m1_acc(2*p+1, j), m1_acc(2*p, j+1), m1_acc(2*p+1, j+1)], T, ob)
            a(f"buffer_store_dwordx4 {vr(ob,4)}, v8, s[12:15], s33 offen offset:{j*1024}{st_mod}")
            a(f"buffer_store_dwordx4 {vr(ob+4,4)}, v8, s[12:15], s33 offen offset:{(j+1)*1024}{st_mod}")
            blk += 1
        a("s_add_u32 s33, s33, 8192")
    ob = 48 + (blk % 4) * 8
    gelu_block([m1_acc(6, j) for j in range(4)], T, ob)
    for j in range(4):
        a(f"buffer_store_dwordx2 {vr(ob+2*j,2)}, v8, s[12:15], s34 offen offset:{j*1024}{st_mod}")

def gen_mlp1(a, name="mlp1_kernel"):
    kernel_begin(a, name)
    a("s_cmp_ge_u32 s2, 128")
    a("s_cbranch_scc1 M1_END")
    a(f"s_load_dwordx2 s[4:5], s[0:1], {KA['w1']}")
    a(f"s_load_dwordx2 s[6:7], s[0:1], {KA['ws']}")
    a(f"s_load_dwordx2 s[40:41], s[0:1], {KA['b1']}")
    lane_ids(a)
    a("s_and_b32 s27, s2, 7")
    a("s_lshr_b32 s28, s2, 3")
    a("s_and_b32 s21, s27, 1")
    a("s_lshl_b32 s21, s21, 2")
    a("s_and_b32 s29, s28, 3")
    a("s_add_u32 s21, s21, s29")
    a("s_lshr_b32 s22, s27, 1")
    a("s_lshl_b32 s22, s22, 2")
    a("s_lshr_b32 s29, s28, 2")
    a("s_add_u32 s22, s22, s29")
    a("s_waitcnt lgkmcnt(0)")
    srd(a, 8, 4, SZ['w1']); srd(a, 12, 6, SZ['ws']); srd(a, 16, 40, SZ['b1'])
    a("s_cmp_ge_u32 s20, 4")
    a("s_cbranch_scc1 M1_LOADER")
    mlp1_compute(a, "M1")
    mlp1_epilogue(a, "M1")
    a("s_branch M1_END")
    a.label("M1_LOADER")
    mlp1_loader(a, "M1")
    a.label("M1_END")
    a("s_endpgm")
    return kernel_desc(name, 256)

M2_SLOT = 32768
M2_R = 4
M2_NS1, M2_NS2 = 56, 16
M2_ACC = 128
M2_SET = [(16, 32), (48, 64)]
def m2_acc(i, j): return M2_ACC + (i * 4 + j) * 4

def mlp2_loader(a, pfx):
    a("s_sub_u32 s27, s20, 4              ; lw")
    a("v_lshrrev_b32 v4, 3, v1            ; l/8")
    a("v_and_b32 v5, 7, v1")
    a("v_and_b32 v6, 6, v4                ; ((row>>1)&3)<<1")
    a("v_xor_b32 v5, v5, v6")
    a("s_lshr_b32 s28, s27, 1")
    a("s_lshl_b32 s28, s28, 5")
    a("v_add_u32 v4, s28, v4")
    a("s_and_b32 s29, s27, 1              ; cb")
    a("s_lshl_b32 s30, s29, 7")
    a("v_lshl_add_u32 v5, v5, 4, s30")
    a("s_lshl_b32 s31, s22, 8")
    a("v_lshl_add_u32 v6, v4, 12, v5")
    a("v_add_u32 v6, s31, v6")
    for i in range(4): a(f"v_add_u32 v{8+i}, {i*(8*4096-1024)}, v6")
    a("s_lshl_b32 s31, s21, 8")
    a("v_lshl_add_u32 v6, v4, 11, v5")
    a("v_add_u32 v6, s31, v6")
    for i in range(4): a(f"v_add_u32 v{12+i}, {i*(8*2048-1024)}, v6")
    a("s_lshl_b32 s32, s27, 12            ; lw*4096")
    a(f"s_mul_i32 s31, s21, {112*8192}")
    a("s_add_u32 s31, s31, s32")
    a(f"s_add_u32 s31, s31, {WS_U}")
    a("v_lshl_add_u32 v7, v1, 4, s31")
    a("s_lshl_b32 s31, s22, 18")
    a("s_add_u32 s31, s31, s32")
    a(f"s_add_u32 s31, s31, {WS_O}")
    a("v_lshl_add_u32 v16, v1, 4, s31")
    a("s_lshl_b32 s30, s29, 13")
    a("s_lshl_b32 s28, s28, 7")
    a("s_add_u32 s30, s30, s28")
    a("s_add_u32 s31, s32, 16384")
    a("s_mov_b32 s24, 0")
    a("s_mov_b32 s25, 0")
    a("s_mov_b32 s26, 0")
    def issue(part):
        tb, sr_, fv, ts = (8, 8, 7, 64*4096) if part == 1 else (12, 44, 16, 64*2048)
        a("s_add_u32 m0, s24, s30")
        a("s_nop 0")
        for i in range(4): a(f"buffer_load_dwordx4 v{tb+i}, s[{sr_}:{sr_+3}], s25 offen offset:{i*1024} lds")
        a("s_add_u32 m0, s24, s31")
        a(f"s_add_u32 s25, s25, {ts}")
        for i in range(4): a(f"buffer_load_dwordx4 v{fv}, s[12:15], s26 offen offset:{i*1024} lds")
        a("s_add_u32 s26, s26, 16384")
        for x in slot_advance(24, M2_SLOT, M2_R): a(x)
    n = 8; R = M2_R; NS = M2_NS1 + M2_NS2
    for _ in range(R): issue(1)
    a(f"s_waitcnt vmcnt({(R-1)*n})")
    a("s_barrier")
    a(f"s_mov_b32 s23, {M2_NS1 - R}")
    a.label(f"{pfx}_LDL1")
    a(f"s_waitcnt vmcnt({(R-2)*n})")
    a("s_barrier")
    issue(1)
    a("s_sub_u32 s23, s23, 1")
    a("s_cmp_lg_u32 s23, 0")
    a(f"s_cbranch_scc1 {pfx}_LDL1")
    a("s_mov_b32 s25, 0")
    a("s_mov_b32 s26, 0")
    a(f"s_mov_b32 s23, {M2_NS2}")
    a.label(f"{pfx}_LDL2")
    a(f"s_waitcnt vmcnt({(R-2)*n})")
    a("s_barrier")
    issue(2)
    a("s_sub_u32 s23, s23, 1")
    a("s_cmp_lg_u32 s23, 0")
    a(f"s_cbranch_scc1 {pfx}_LDL2")
    for i in range(NS - R, NS - 1):
        left = (NS - 1) - (i + 1)
        a(f"s_waitcnt vmcnt({left*n})")
        a("s_barrier")

def mlp2_compute(a, pfx):
    a("s_lshr_b32 s27, s20, 1")
    a("s_and_b32 s28, s20, 1")
    a("s_lshl_b32 s29, s22, 7")
    a("s_lshl_b32 s30, s28, 6")
    a("s_add_u32 s29, s29, s30")
    a("v_add_u32 v4, s29, v2")
    a("v_lshlrev_b32 v5, 1, v4")
    a("v_lshlrev_b32 v6, 2, v4")
    a(f"s_mov_b32 s30, {WS_G}")
    for j in range(4):
        a(f"buffer_load_ushort v{84+j}, v5, s[16:19], 0 offen offset:{j*32}")
        a(f"buffer_load_dword v{88+j}, v6, s[12:15], s30 offen offset:{j*64}")
    a("v_lshlrev_b32 v92, 11, v4")
    a("s_lshl_b32 s30, s21, 8")
    a("s_lshl_b32 s31, s27, 7")
    a("s_add_u32 s30, s30, s31")
    a("v_add_u32 v92, s30, v92")
    a("v_and_b32 v5, 1, v3")
    a("v_lshl_add_u32 v92, v5, 5, v92")
    a("v_lshrrev_b32 v5, 1, v3")
    a("v_lshl_add_u32 v92, v5, 4, v92")
    a("v_lshrrev_b32 v5, 2, v1            ; 4g + r = l/4")
    a("v_lshlrev_b32 v6, 7, v5")
    a("v_and_b32 v7, 3, v1")
    a("v_lshl_add_u32 v6, v7, 3, v6")
    a("v_lshrrev_b32 v5, 1, v5")
    a("v_and_b32 v5, 3, v5")
    a("v_lshl_add_u32 v6, v5, 5, v6")
    a("s_lshl_b32 s30, s28, 13")
    a("s_lshl_b32 s31, s27, 13")
    for j in range(4):
        a(f"v_xor_b32 v7, {j*32}, v6")
        a(f"v_add_u32 v{10+j}, s30, v7")
        a(f"v_add_u32 v{94+j}, s31, v7")
    a("s_lshl_b32 s30, s27, 12")
    a("s_add_u32 s30, s30, 16384")
    a("v_lshl_add_u32 v14, v1, 4, s30")
    a("s_lshl_b32 s30, s28, 12")
    a("s_add_u32 s30, s30, 16384")
    a("v_lshl_add_u32 v98, v1, 4, s30")
    for i in range(5): a(f"v_mov_b32 v{4+i}, v{10+i}")
    for r in range(64): a(f"v_mov_b32 v{M2_ACC+r}, 0")
    a("s_mov_b32 s24, 0")
    def reads(st, t):
        Fb, Tb = M2_SET[st]
        o = []
        for j in range(4):
            o.append(f"ds_read_b128 {vr(Fb+4*j,4)}, v8 offset:{t*8192 + j*1024}")
            o.append(f"ds_read_b64_tr_b16 {vr(Tb+4*j,2)}, v{4+j} offset:{t*4096}")
            o.append(f"ds_read_b64_tr_b16 {vr(Tb+4*j+2,2)}, v{4+j} offset:{t*4096+2048}")
        return o
    def mfmas(st, part):
        Fb, Tb = M2_SET[st]
        A, B = (Fb, Tb) if part == 1 else (Tb, Fb)
        return [f"v_mfma_f32_16x16x32_bf16 {vr(m2_acc(i,j),4)}, {vr(A+4*i,4)}, {vr(B+4*j,4)}, {vr(m2_acc(i,j),4)}"
                for i in range(4) for j in range(4)]
    def stage(part, last=False, nextpart=None):
        base = 10 if (nextpart or part) == 1 else 94
        upd = slot_advance(24, M2_SLOT, M2_R) + [f"v_add_u32 v{4+i}, s24, v{base+i}" for i in range(5)]
        rd = reads(1, 1)
        m = mfmas(0, part)
        seq = interleave(m, rd, 0, 10)
        if not last:
            out = []; k = 0; cnt = 0
            for x in seq:
                out.append(x)
                if x.startswith("v_mfma"):
                    cnt += 1
                    if cnt > 10:
                        for _ in range(2):
                            if k < len(upd): out.append(upd[k]); k += 1
            assert k == len(upd)
            seq = out
        for x in seq: a(x)
        a("s_waitcnt lgkmcnt(0)")
        if not last:
            a("s_barrier")
            seq = interleave(mfmas(1, part), reads(0, 0), 0, 10)
        else:
            seq = mfmas(1, part)
        for x in seq: a(x)
        if not last: a("s_waitcnt lgkmcnt(0)")
    a("s_barrier")
    for x in reads(0, 0): a(x)
    a(f"s_mov_b32 s23, {(M2_NS1-2)//2}")
    a("s_waitcnt vmcnt(0) lgkmcnt(0)")
    for j in range(4):
        a(f"v_sub_f32 v{88+j}, 1.0, v{88+j}")
        a(f"v_lshlrev_b32 v{84+j}, 16, v{84+j}")
    for j in range(4):
        a(f"v_mul_f32 v{84+j}, v{84+j}, v{88+j}")
    a(".p2align 6")
    a.label(f"{pfx}_CL1")
    stage(1); stage(1)
    a("s_sub_u32 s23, s23, 1")
    a("s_cmp_lg_u32 s23, 0")
    a(f"s_cbranch_scc1 {pfx}_CL1")
    stage(1); stage(1, nextpart=2)
    a("s_nop 3")
    for i in range(4):
        for j in range(4):
            for r in range(4):
                x = m2_acc(i, j) + r
                a(f"v_fma_f32 v{x}, v{x}, v{88+j}, v{84+j}")
    a(f"s_mov_b32 s23, {(M2_NS2-2)//2}")
    a(".p2align 6")
    a.label(f"{pfx}_CL2")
    stage(2); stage(2)
    a("s_sub_u32 s23, s23, 1")
    a("s_cmp_lg_u32 s23, 0")
    a(f"s_cbranch_scc1 {pfx}_CL2")
    stage(2); stage(2, last=True)
    a("s_nop 3")
    a("s_mov_b32 s30, 0")
    for j in range(4):
        for ip in range(2):
            X, Y = m2_acc(2*ip, j), m2_acc(2*ip+1, j)
            o = 16 + (j*2+ip) * 4
            a(f"v_cvt_pk_bf16_f32 v{o}, v{X}, v{X+1}")
            a(f"v_cvt_pk_bf16_f32 v{o+1}, v{X+2}, v{X+3}")
            a(f"v_cvt_pk_bf16_f32 v{o+2}, v{Y}, v{Y+1}")
            a(f"v_cvt_pk_bf16_f32 v{o+3}, v{Y+2}, v{Y+3}")
            a("s_nop 1")
            a(f"v_permlane16_swap_b32 v{o}, v{o+2}")
            a(f"v_permlane16_swap_b32 v{o+1}, v{o+3}")
            a(f"buffer_store_dwordx4 {vr(o,4)}, v92, s[48:51], s30 offen offset:{ip*64}")
        a(f"s_add_u32 s30, s30, {16*2048}")

def gen_mlp2(a, name="mlp2_kernel"):
    kernel_begin(a, name)
    a("s_cmp_ge_u32 s2, 128")
    a("s_cbranch_scc1 M2_END")
    a(f"s_load_dwordx2 s[4:5], s[0:1], {KA['w2']}")
    a(f"s_load_dwordx2 s[6:7], s[0:1], {KA['ws']}")
    a(f"s_load_dwordx2 s[40:41], s[0:1], {KA['b2']}")
    a(f"s_load_dwordx2 s[42:43], s[0:1], {KA['wo']}")
    a(f"s_load_dwordx2 s[52:53], s[0:1], {KA['out']}")
    lane_ids(a)
    a("s_and_b32 s27, s2, 7")
    a("s_lshr_b32 s28, s2, 3")
    a("s_and_b32 s21, s27, 1")
    a("s_lshl_b32 s21, s21, 2")
    a("s_and_b32 s29, s28, 3")
    a("s_add_u32 s21, s21, s29")
    a("s_lshr_b32 s22, s27, 1")
    a("s_lshl_b32 s22, s22, 2")
    a("s_lshr_b32 s29, s28, 2")
    a("s_add_u32 s22, s22, s29")
    a("s_waitcnt lgkmcnt(0)")
    srd(a, 8, 4, SZ['w2']); srd(a, 12, 6, SZ['ws']); srd(a, 16, 40, SZ['b2']); srd(a, 44, 42, SZ['wo']); srd(a, 48, 52, SZ['out'])
    a("s_cmp_ge_u32 s20, 4")
    a("s_cbranch_scc1 M2_LOADER")
    mlp2_compute(a, "M2")
    a("s_branch M2_END")
    a.label("M2_LOADER")
    mlp2_loader(a, "M2")
    a.label("M2_END")
    a("s_endpgm")
    return kernel_desc(name, 256)
```

```python
from common import *

K1_LDS = 65536 + 8 * 2112 + 16384
def gen_k1(a, name="prep_kernel"):
    LW, LH, LP = 0, 65536, 65536 + 8 * 2112
    kernel_begin(a, name)
    a("s_cmp_ge_u32 s2, 256")
    a("s_cbranch_scc1 K1_END")
    a("s_and_b32 s24, s2, 7")
    a("s_lshr_b32 s25, s2, 3")
    a("s_and_b32 s26, s25, 1          ; kv")
    a("s_lshr_b32 s25, s25, 1")
    a("s_lshl_b32 s24, s24, 4")
    a("s_add_u32 s27, s24, s25        ; rg")
    a("s_lshl_b32 s28, s26, 3")
    a("s_add_u32 s28, s28, 16")
    a(f"s_load_dwordx2 s[4:5], s[0:1], {KA['x']}")
    a("s_load_dwordx2 s[6:7], s[0:1], s28")
    a(f"s_load_dwordx2 s[30:31], s[0:1], {KA['gw']}")
    a(f"s_load_dwordx2 s[32:33], s[0:1], {KA['ws']}")
    a("v_lshrrev_b32 v1, 6, v0")
    a("v_and_b32 v2, 63, v0           ; lane")
    a("v_readfirstlane_b32 s29, v1")
    a("v_lshlrev_b32 v3, 4, v2        ; lane*16")
    a("v_and_b32 v4, 15, v2           ; c16")
    a("v_lshrrev_b32 v5, 4, v2        ; g")
    a("s_lshl_b32 s34, s27, 4         ; s0 = 16*rg")
    a("s_lshl_b32 s35, s26, 3")
    a("s_add_u32 s35, s35, s34")
    a("s_add_u32 s36, s35, s29")
    a("s_lshl_b32 s37, s36, 11")
    a("v_add_u32 v6, s34, v4")
    a("v_lshlrev_b32 v6, 11, v6")
    a("v_lshl_add_u32 v6, v5, 4, v6")
    a("s_lshl_b32 s38, s29, 8         ; w*256 bytes")
    a("s_lshl_b32 s39, s29, 13")
    a("s_waitcnt lgkmcnt(0)")
    srd(a, 8, 4, SZ['x']); srd(a, 12, 6, SZ['wk']); srd(a, 16, 30, SZ['gw']); srd(a, 20, 32, SZ['ws'])
    a("buffer_load_dwordx4 v[8:11], v3, s[8:11], s37 offen")
    a("buffer_load_dwordx4 v[12:15], v3, s[8:11], s37 offen offset:1024")
    a("buffer_load_dwordx4 v[16:19], v3, s[16:19], 0 offen")
    a("buffer_load_dwordx4 v[20:23], v3, s[16:19], 0 offen offset:1024")
    a("s_mov_b32 m0, s39")
    a("s_add_u32 s40, s39, 4096")
    for i in range(4):
        a(f"buffer_load_dwordx4 v3, s[12:15], s39 offen offset:{i*1024} lds")
    a("s_mov_b32 m0, s40")
    a("s_nop 0")
    for i in range(4):
        a(f"buffer_load_dwordx4 v3, s[12:15], s40 offen offset:{i*1024} lds")
    XF = 24
    for t in range(4):
        a(f"buffer_load_dwordx4 {vr(XF+4*t,4)}, v6, s[8:11], s38 offen offset:{t*64}")
    XV, GV = 40, 56
    a("s_waitcnt vmcnt(12)")
    for i in range(8):
        a(f"v_lshlrev_b32 v{XV+2*i}, 16, v{8+i}")
        a(f"v_and_b32 v{XV+2*i+1}, 0xffff0000, v{8+i}")
    for i in range(8):
        a(f"v_lshlrev_b32 v{GV+2*i}, 16, v{16+i}")
        a(f"v_and_b32 v{GV+2*i+1}, 0xffff0000, v{16+i}")
    a(f"v_add_f32 v72, v{XV}, v{XV+1}")
    a(f"v_mul_f32 v73, v{XV}, v{GV}")
    a(f"v_add_f32 v74, v{XV+2}, v{XV+3}")
    a(f"v_mul_f32 v75, v{XV+1}, v{GV+1}")
    for i in range(4, 16, 2):
        a(f"v_add_f32 v72, v72, v{XV+i}")
        a(f"v_add_f32 v74, v74, v{XV+i+1}")
    for i in range(2, 16, 2):
        a(f"v_fmac_f32 v73, v{XV+i}, v{GV+i}")
        a(f"v_fmac_f32 v75, v{XV+i+1}, v{GV+i+1}")
    a("v_add_f32 v72, v72, v74")
    a("v_add_f32 v73, v73, v75")
    wave_reduce(a, [72, 73])
    a("s_nop 0")
    a("v_readlane_b32 s41, v72, 63")
    a("v_readlane_b32 s42, v73, 63")
    a("s_nop 1")
    a(f"v_mov_b32 v74, {fhex(-1.0/1024)}")
    a("v_mul_f32 v74, s41, v74         ; -mean")
    for i in range(16):
        a(f"v_add_f32 v{XV+i}, v{XV+i}, v74")
    a(f"v_mul_f32 v72, v{XV}, v{XV}")
    a(f"v_mul_f32 v73, v{XV+1}, v{XV+1}")
    for i in range(2, 16, 2):
        a(f"v_fmac_f32 v72, v{XV+i}, v{XV+i}")
        a(f"v_fmac_f32 v73, v{XV+i+1}, v{XV+i+1}")
    a("v_add_f32 v72, v72, v73")
    wave_reduce(a, [72])
    a("s_nop 0")
    a("v_readlane_b32 s41, v72, 63")
    a(f"v_mov_b32 v74, {fhex(1.0/1024)}")
    a(f"v_mov_b32 v75, {fhex(1e-5)}")
    a("v_fma_f32 v74, s41, v74, v75")
    a("v_rsq_f32 v74, v74")
    a(f"v_mov_b32 v75, {fhex(-LOG2E)}")
    a("v_mul_f32 v75, s42, v75")
    a("v_exp_f32 v75, v75")
    for i in range(16):
        a(f"v_mul_f32 v{XV+i}, v{XV+i}, v74")
    a("v_add_f32 v75, 1.0, v75")
    a("v_rcp_f32 v75, v75")
    for i in range(8):
        a(f"v_cvt_pk_bf16_f32 v{8+i}, v{XV+2*i}, v{XV+2*i+1}")
    a(f"s_mul_i32 s43, s29, 2112")
    a(f"s_add_u32 s43, s43, {LH}")
    a("v_add_u32 v7, s43, v3")
    a("ds_write_b128 v7, v[8:11]")
    a("ds_write_b128 v7, v[12:15] offset:1024")
    a("s_lshl_b32 s44, s36, 2")
    a(f"s_add_u32 s44, s44, {WS_G}")
    a("v_mov_b32 v76, 0")
    a("s_mov_b64 exec, 1")
    a("buffer_store_dword v75, v76, s[20:23], s44 offen")
    a("s_mov_b64 exec, -1")
    a("v_lshrrev_b32 v76, 2, v4")
    a("v_lshl_add_u32 v76, v5, 3, v76      ; 8g + r")
    a("v_lshlrev_b32 v76, 6, v76")
    a("v_and_b32 v77, 3, v2")
    a("v_lshl_add_u32 v76, v77, 3, v76")
    a("v_add_u32 v76, s39, v76")
    a("s_waitcnt vmcnt(1)")
    WF = 80
    for t in range(4):
        for ct in range(2):
            b = WF + (t * 2 + ct) * 4
            a(f"ds_read_b64_tr_b16 {vr(b,2)}, v76 offset:{t*2048 + ct*32}")
            a(f"ds_read_b64_tr_b16 {vr(b+2,2)}, v76 offset:{t*2048 + ct*32 + 256}")
    AC = 112
    a("s_cmp_eq_u32 s26, 1")
    a("s_waitcnt lgkmcnt(0)")
    a("s_cbranch_scc1 K1_V")
    for t in range(4):
        for ct in range(2):
            b = WF + (t * 2 + ct) * 4
            c = "0" if t == 0 else vr(AC + 4 * ct, 4)
            a(f"v_mfma_f32_16x16x32_bf16 {vr(AC+4*ct,4)}, {vr(b,4)}, {vr(XF+4*t,4)}, {c}")
    a("s_branch K1_J")
    a.label("K1_V")
    for t in range(4):
        for ct in range(2):
            b = WF + (t * 2 + ct) * 4
            c = "0" if t == 0 else vr(AC + 4 * ct, 4)
            a(f"v_mfma_f32_16x16x32_bf16 {vr(AC+4*ct,4)}, {vr(XF+4*t,4)}, {vr(b,4)}, {c}")
    a.label("K1_J")
    a("s_lshl_b32 s45, s29, 11")
    a(f"s_add_u32 s45, s45, {LP}")
    a("v_add_u32 v77, s45, v3")
    a("s_nop 7")
    a(f"ds_write_b128 v77, {vr(AC,4)}")
    a(f"ds_write_b128 v77, {vr(AC+4,4)} offset:1024")
    a("s_waitcnt lgkmcnt(0)")
    a("s_barrier")
    a("v_lshrrev_b32 v76, 2, v4")
    a("v_mul_u32_u24 v76, 2112, v76")
    a("v_lshl_add_u32 v76, v5, 5, v76")
    a("v_and_b32 v77, 3, v2")
    a("v_lshl_add_u32 v76, v77, 3, v76")
    a(f"s_add_u32 s45, s38, {LH}")
    a("v_add_u32 v76, s45, v76")
    for p in range(2):
        a(f"ds_read_b64_tr_b16 {vr(8+4*p,2)}, v76 offset:{p*128}")
        a(f"ds_read_b64_tr_b16 {vr(10+4*p,2)}, v76 offset:{p*128 + 4*2112}")
    a("s_lshl_b32 s46, s29, 19")
    a("s_lshr_b32 s47, s35, 5")
    a("s_lshl_b32 s47, s47, 13")
    a("s_add_u32 s46, s46, s47")
    a("s_and_b32 s47, s35, 31")
    a("s_lshl_b32 s47, s47, 5          ; (sL%32)/8*256")
    a("s_add_u32 s46, s46, s47")
    a(f"s_add_u32 s46, s46, {WS_HT}")
    a("s_add_u32 s47, s46, 4096")
    a("v_lshlrev_b32 v77, 10, v5")
    a("v_lshl_add_u32 v77, v4, 4, v77")
    a("s_waitcnt lgkmcnt(2)")
    a("buffer_store_dwordx4 v[8:11], v77, s[20:23], s46 offen")
    a("s_waitcnt lgkmcnt(0)")
    a("buffer_store_dwordx4 v[12:15], v77, s[20:23], s47 offen")
    a("s_cmp_lg_u32 s29, 0")
    a("s_cbranch_scc1 K1_END")
    a(f"v_add_u32 v76, {LP}, v3")
    PR = 24
    for w in range(8):
        for ct in range(2):
            a(f"ds_read_b128 {vr(PR + (w*2+ct)*4, 4)}, v76 offset:{w*2048 + ct*1024}")
    a("s_waitcnt lgkmcnt(0)")
    for st in (1, 2, 4):
        for w in range(0, 8, 2 * st):
            for j in range(8):
                a(f"v_add_f32 v{PR + w*8 + j}, v{PR + w*8 + j}, v{PR + (w+st)*8 + j}")
    for j in range(4):
        a(f"v_cvt_pk_bf16_f32 v{16+j}, v{PR+2*j}, v{PR+2*j+1}")
    a("s_lshr_b32 s46, s27, 1")
    a("s_lshl_b32 s46, s46, 12")
    a(f"s_add_u32 s46, s46, {WS_KV}")
    a("s_and_b32 s47, s27, 1           ; half16")
    a("v_and_b32 v76, 1, v5")
    a("v_lshlrev_b32 v76, 9, v76       ; h*32*16")
    a("v_lshl_add_u32 v76, v4, 4, v76  ; + c*16")
    a("v_lshrrev_b32 v77, 1, v5")
    a("v_lshl_add_u32 v76, v77, 3, v76 ; + q8*8")
    a("s_cmp_eq_u32 s26, 1")
    a("s_cbranch_scc1 K1_VS")
    a("s_lshl_b32 s47, s47, 8")
    a("s_add_u32 s46, s46, s47")
    a("buffer_store_dwordx2 v[16:17], v76, s[20:23], s46 offen")
    a("buffer_store_dwordx2 v[18:19], v76, s[20:23], s46 offen offset:1024")
    for j in range(4):
        a(f"v_lshlrev_b32 v{PR+2*j}, 16, v{16+j}")
        a(f"v_and_b32 v{PR+2*j+1}, 0xffff0000, v{16+j}")
    a(f"v_mul_f32 v20, v{PR}, v{PR}")
    for j in range(1, 8):
        a(f"v_fmac_f32 v20, v{PR+j}, v{PR+j}")
    a("v_mov_b32 v21, v20")
    a("s_nop 1")
    a("v_permlane16_swap_b32 v20, v21")
    a("v_add_f32 v20, v20, v21")
    a("v_mov_b32 v21, v20")
    a("s_nop 1")
    a("v_permlane32_swap_b32 v20, v21")
    a("v_add_f32 v20, v20, v21")
    wave_reduce(a, [20], op="v_max_f32")
    a("s_lshl_b32 s46, s27, 2")
    a(f"s_add_u32 s46, s46, {WS_KN}")
    a("v_mov_b32 v21, 0")
    a("s_mov_b32 exec_lo, 0")
    a("s_mov_b32 exec_hi, 0x80000000")
    a("buffer_store_dword v20, v21, s[20:23], s46 offen")
    a("s_branch K1_END")
    a.label("K1_VS")
    a("s_lshl_b32 s47, s47, 10")
    a("s_add_u32 s46, s46, s47")
    a("buffer_store_dwordx2 v[16:17], v76, s[20:23], s46 offen offset:2048")
    a("buffer_store_dwordx2 v[18:19], v76, s[20:23], s46 offen offset:2304")
    a.label("K1_END")
    a("s_endpgm")
    return kernel_desc(name, 128)
```

```python
import sys
sys.path.insert(0, "gen")
from common import *
from k1 import gen_k1, K1_LDS
from gemm import gen_mlp1, gen_mlp2
from attn import gen_attn

HDR = open("gated_mix__grouped_kv_mqa__mixer_token_mlp__prompt.s.ref").read().split("; Override launch")[0]

def build_v1():
    a = Asm()
    launches = [("prep_kernel", 256, 512, K1_LDS), ("attn_kernel", 128, 512, 163840),
                ("mlp1_kernel", 128, 512, 147456), ("mlp2_kernel", 128, 512, 131072)]
    descs = [gen_k1(a), gen_attn(a), gen_mlp1(a), gen_mlp2(a)]
    return finish(a, launches, descs)

def finish(a, launches, descs):
    body = a.text()
    probs = check_text(body)
    for p in probs: print("HAZARD", p)
    t = HDR
    for k, g, b, l in launches:
        t += f"; @launch kernel={k} grid=({g},1,1) block=({b},1,1) lds={l}\n"
    t += '.amdgcn_target "amdgcn-amd-amdhsa--gfx950"\n.text\n' + body
    t += '.section .rodata,"a"\n'
    for d in descs: t += ".p2align 6\n" + d
    return t

if __name__ == "__main__":
    which = sys.argv[1] if len(sys.argv) > 1 else "v1"
    out = sys.argv[2] if len(sys.argv) > 2 else "gated_mix__grouped_kv_mqa__mixer_token_mlp__prompt.s"
    t = globals()["build_" + which]()
    open(out, "w").write(t)
    print("wrote", out, len(t), "bytes")
```

```python
from common import *
from gemm import lane_ids, slot_advance

QA, QB, KF, VF, PA, PB, ONES, LA, LB = 16, 24, 32, 40, 48, 56, 64, 68, 72
SA, SB, OA, OB, NMA, NMB = 80, 96, 112, 128, 144, 160
QSET = [176, 200]
VG = 76
VKN = 77
BOUND_T = 40.0
M32 = "v_mfma_f32_32x32x16_bf16"
M16 = "v_mfma_f32_16x16x32_bf16"

def attn_body(a, pfx, st_mod=""):
    R = 4; NS = 16; SLOT = 32768
    a("s_cmp_ge_u32 s20, 4")
    a("s_cselect_b32 s8, s6, s4")
    a("s_cselect_b32 s9, s7, s5")
    a(f"s_cselect_b32 s10, 0x{SZ['wq']:x}, 0x{SZ['x']:x}" if False else "s_mov_b32 s10, 0x200000")
    a("s_cselect_b32 s10, s10, 0x400000")
    a("s_and_b32 s9, s9, 0xffff")
    a("s_mov_b32 s11, 0x20000")
    a("v_lshlrev_b32 v4, 4, v1              ; lane*16")
    a("s_lshl_b32 s27, s20, 12")
    a(f"s_add_u32 s28, s27, {WS_KV}")
    a("s_add_u32 m0, s27, 131072")
    a(f"s_mov_b32 s29, {WS_KN}")
    for i in range(4): a(f"buffer_load_dwordx4 v4, s[12:15], s28 offen offset:{i*1024} lds")
    a("v_lshlrev_b32 v5, 3, v1")
    a(f"buffer_load_dwordx2 v[78:79], v5, s[12:15], s29 offen")
    a("s_and_b32 s30, s20, 3                ; st")
    a("s_lshr_b32 s31, s20, 2               ; hp")
    a("s_lshl_b32 s32, s22, 7")
    a("s_lshl_b32 s33, s30, 5")
    a("s_add_u32 s32, s32, s33")
    a("s_lshl_b32 s33, s32, 2")
    a(f"s_add_u32 s33, s33, {WS_G}")
    a("v_and_b32 v5, 31, v1                 ; q")
    a("v_lshlrev_b32 v6, 2, v5")
    a(f"buffer_load_dword v{VG}, v6, s[12:15], s33 offen")
    a("v_lshrrev_b32 v6, 3, v1              ; l/8")
    a("v_and_b32 v7, 7, v1")
    a("s_cmp_ge_u32 s20, 4")
    a(f"s_cbranch_scc1 {pfx}_WQA")
    a("v_xor_b32 v7, v7, v3")
    a("s_lshl_b32 s34, s22, 7")
    a("s_lshl_b32 s35, s20, 5")
    a("s_add_u32 s34, s34, s35")
    a("v_add_u32 v6, s34, v6")
    a("v_lshlrev_b32 v6, 11, v6")
    a("v_lshl_add_u32 v12, v7, 4, v6")
    a("v_xor_b32 v7, 4, v7")
    a("v_lshl_add_u32 v13, v7, 4, v6")
    a("s_movk_i32 s36, 128")
    a(f"s_branch {pfx}_AJ")
    a.label(f"{pfx}_WQA")
    a("v_and_b32 v12, 2, v6")
    a("v_lshlrev_b32 v12, 1, v12")
    a("v_xor_b32 v7, v7, v12")
    a("s_and_b32 s34, s20, 1")
    a("s_lshl_b32 s34, s34, 5")
    a("v_add_u32 v6, s34, v6")
    a("v_lshlrev_b32 v6, 11, v6")
    a("s_lshr_b32 s34, s20, 1")
    a("s_and_b32 s34, s34, 1")
    a("s_lshl_b32 s34, s34, 7")
    a("s_lshl_b32 s35, s21, 8")
    a("s_add_u32 s34, s34, s35")
    a("v_add_u32 v6, s34, v6")
    a("v_lshl_add_u32 v12, v7, 4, v6")
    a("v_mov_b32 v13, v12")
    a(f"s_mov_b32 s36, {64*2048}")
    a.label(f"{pfx}_AJ")
    for i in range(4): a(f"v_add_u32 v{8+i}, {i*(8*2048-1024)}, v{12 + (i&1)}")
    a("s_mov_b32 s24, 0")
    a("s_mov_b32 s25, 0                     ; soffset")
    def issue_list():
        o = ["s_add_u32 m0, s24, s27", f"s_add_u32 s24, s24, {SLOT}"]
        for i in range(4): o.append(f"buffer_load_dwordx4 v{8+i}, s[8:11], s25 offen offset:{i*1024} lds")
        o += ["s_add_u32 s25, s25, s36", f"s_and_b32 s24, s24, {SLOT*R-1}"]
        return o
    for _ in range(R):
        for x in issue_list(): a(x)
    XB, WB, XA, WA = 224, 228, 230, 234
    a("s_lshl_b32 s34, s30, 5")
    a("v_add_u32 v6, s34, v5")
    a("v_lshrrev_b32 v7, 1, v6")
    a("v_and_b32 v7, 7, v7")
    a("v_lshrrev_b32 v12, 5, v1             ; h")
    a("v_xor_b32 v7, v7, v12")
    a("v_lshlrev_b32 v6, 7, v6")
    a("v_lshl_add_u32 v6, v7, 4, v6")
    for t in range(4): a(f"v_xor_b32 v{XB+t}, {t*32}, v6")
    a("v_lshrrev_b32 v6, 2, v2              ; r")
    a("v_lshl_add_u32 v7, v12, 3, v6")
    a("v_lshlrev_b32 v7, 7, v7")
    a("v_and_b32 v6, 2, v6")
    a("v_and_b32 v13, 1, v3                 ; jh")
    a("v_or_b32 v6, v6, v13")
    a("v_lshl_add_u32 v7, v6, 5, v7")
    a("v_and_b32 v6, 3, v1")
    a("v_lshl_add_u32 v7, v6, 3, v7")
    a("s_lshl_b32 s34, s31, 13")
    a("s_add_u32 s34, s34, 16384")
    a(f"v_add_u32 v{WB}, s34, v7")
    a(f"v_xor_b32 v{WB+1}, 64, v{WB}")
    for i in range(6): a(f"v_mov_b32 v{XA+i}, v{XB+i}")
    for r in range(32): a(f"v_mov_b32 v{SA+r}, 0")
    a("s_mov_b32 s26, 0")
    def reads(st, half):
        b = QSET[st]; o = []
        for tt in range(2):
            t = 2 * half + tt
            o.append(f"ds_read_b128 {vr(b+4*tt,4)}, v{XA+t}")
            for e in range(2):
                w = b + 8 + (tt * 2 + e) * 4
                o.append(f"ds_read_b64_tr_b16 {vr(w,2)}, v{WA+e} offset:{t*2048}")
                o.append(f"ds_read_b64_tr_b16 {vr(w+2,2)}, v{WA+e} offset:{t*2048+512}")
        return o
    def mf(st):
        b = QSET[st]; o = []
        for tt in range(2):
            for e in range(2):
                acc = SA if e == 0 else SB
                o.append(f"{M32} {vr(acc,16)}, {vr(b+8+(tt*2+e)*4,4)}, {vr(b+4*tt,4)}, {vr(acc,16)}")
        return o
    upd = [f"s_add_u32 s26, s26, {SLOT}", f"s_and_b32 s26, s26, {SLOT*R-1}"] + [f"v_add_u32 v{XA+i}, s26, v{XB+i}" for i in range(6)]
    def stage(vm, dma, last=False):
        for x in interleave(mf(0), reads(1, 1) + ([] if last else upd), 0, 4): a(x)
        if last:
            a("s_waitcnt lgkmcnt(0)")
            a("s_barrier")
            return
        a(f"s_waitcnt vmcnt({vm}) lgkmcnt(0)")
        a("s_barrier")
        for x in interleave(mf(1), reads(0, 0) + (issue_list() if dma else []), 0, 4): a(x)
        a("s_waitcnt lgkmcnt(0)")
    n = 4
    stamp(a, 1)
    a(f"s_waitcnt vmcnt({(R-1)*n})")
    a("s_barrier")
    stamp(a, 2)
    for x in reads(0, 0): a(x)
    a(f"s_mov_b32 s23, {NS-R}")
    a("s_waitcnt lgkmcnt(0)")
    a.label(f"{pfx}_QL")
    stage((R-2)*n, True)
    a("s_sub_u32 s23, s23, 1")
    a("s_cmp_lg_u32 s23, 0")
    a(f"s_cbranch_scc1 {pfx}_QL")
    for i in range(NS - R, NS - 1):
        stage(((NS - 1) - (i + 1)) * n, False)
    stage(0, False, last=True)
    stamp(a, 3)
    a("s_lshl_b32 s27, s20, 11              ; w*2048")
    a(f"s_add_u32 s28, s27, {WS_KV + 2*16384}")
    a("s_mov_b32 s24, s27")
    m1 = mf(1)
    for c in range(8):
        a("s_mov_b32 m0, s24")
        if c < 4: a(m1[c])
        else: a("s_nop 0")
        a("buffer_load_dwordx4 v4, s[12:15], s28 offen lds")
        a("buffer_load_dwordx4 v4, s[12:15], s28 offen offset:1024 lds")
        a("s_add_u32 s24, s24, 16384")
        a("s_add_u32 s28, s28, 16384")
    a("v_add_u32 v5, 131072, v4")
    a("v_add_u32 v6, 147456, v4")
    a(f"ds_read_b128 {vr(KF,4)}, v5")
    a(f"ds_read_b128 {vr(KF+4,4)}, v5 offset:1024")
    a(f"ds_read_b128 {vr(VF,4)}, v5 offset:2048")
    a("v_max_f32 v78, v78, v79")
    wave_reduce(a, [78], op="v_max_f32")
    a("s_nop 0")
    a("v_readlane_b32 s37, v78, 63")
    for r in range(16):
        a(f"v_mov_b32 v{OA+r}, 0"); a(f"v_mov_b32 v{OB+r}, 0")
    for r in range(4):
        a(f"v_mov_b32 v{LA+r}, 0"); a(f"v_mov_b32 v{LB+r}, 0"); a(f"v_mov_b32 v{PB+4+r}, 0"); a(f"v_mov_b32 v{VF+4+r}, 0")
    a("v_lshrrev_b32 v7, 2, v2")
    a("v_xor_b32 v7, v7, v3")
    a("v_and_b32 v7, 1, v7")
    a("v_and_b32 v12, 3, v2")
    a("v_or_b32 v7, v7, v12")
    a("v_cmp_eq_u32 vcc, 0, v7")
    a("v_mov_b32 v12, 0x3f803f80")
    a("s_nop 0")
    a(f"v_cndmask_b32 v{ONES}, 0, v12, vcc")
    for r in range(1, 4): a(f"v_mov_b32 v{ONES+r}, v{ONES}")
    cq = LOG2E / (DH ** 0.5)
    a(f"s_mov_b32 s34, {fhex(cq)}")
    for (Sx, Qx, nr) in ((SA, QA, 12), (SB, QB, 13)):
        for r in range(16): a(f"v_mul_f32 v{Sx+r}, s34, v{Sx+r}")
        a(f"v_mul_f32 v{nr}, v{Sx}, v{Sx}")
        for r in range(1, 16): a(f"v_fmac_f32 v{nr}, v{Sx+r}, v{Sx+r}")
        for i in range(8): a(f"v_cvt_pk_bf16_f32 v{Qx+i}, v{Sx+2*i}, v{Sx+2*i+1}")
    a("v_mov_b32 v14, v12")
    a("v_mov_b32 v15, v13")
    a("s_nop 1")
    a("v_permlane32_swap_b32 v12, v14")
    a("v_permlane32_swap_b32 v13, v15")
    a("v_add_f32 v12, v12, v14")
    a("v_add_f32 v13, v13, v15")
    a(f"v_mov_b32 v14, {fhex(1.03)}")
    a("v_mul_f32 v14, s37, v14")
    a("v_mul_f32 v12, v12, v14")
    a("v_mul_f32 v13, v13, v14")
    a("v_sqrt_f32 v12, v12")
    a("v_sqrt_f32 v13, v13")
    a(f"v_mov_b32 v14, {fhex(BOUND_T)}")
    a("v_max_f32 v15, v12, v13")
    a("v_cmp_nle_f32 vcc, v15, v14")
    a("s_waitcnt lgkmcnt(0)")
    a(f"s_cbranch_vccz {pfx}_FAST")
    a(f"s_mov_b32 s34, {WS_KV}")
    a("v_mov_b32 v12, 0xff800000")
    a("v_mov_b32 v13, 0xff800000")
    a("s_mov_b32 s23, 64")
    a.label(f"{pfx}_MX")
    a(f"buffer_load_dwordx4 {vr(PA,4)}, v4, s[12:15], s34 offen")
    a(f"buffer_load_dwordx4 {vr(PA+4,4)}, v4, s[12:15], s34 offen offset:1024")
    a("s_add_u32 s34, s34, 4096")
    a("s_waitcnt vmcnt(0)")
    a(f"{M32} {vr(SA,16)}, {vr(PA,4)}, {vr(QA,4)}, 0")
    a(f"{M32} {vr(SB,16)}, {vr(PA,4)}, {vr(QB,4)}, 0")
    a(f"{M32} {vr(SA,16)}, {vr(PA+4,4)}, {vr(QA+4,4)}, {vr(SA,16)}")
    a(f"{M32} {vr(SB,16)}, {vr(PA+4,4)}, {vr(QB+4,4)}, {vr(SB,16)}")
    a("s_nop 15")
    for r in range(0, 16, 2): a(f"v_max3_f32 v12, v12, v{SA+r}, v{SA+r+1}")
    for r in range(0, 16, 2): a(f"v_max3_f32 v13, v13, v{SB+r}, v{SB+r+1}")
    a("s_sub_u32 s23, s23, 1")
    a("s_cmp_lg_u32 s23, 0")
    a(f"s_cbranch_scc1 {pfx}_MX")
    a("v_mov_b32 v14, v12")
    a("v_mov_b32 v15, v13")
    a("s_nop 1")
    a("v_permlane32_swap_b32 v12, v14")
    a("v_permlane32_swap_b32 v13, v15")
    a("v_max_f32 v12, v12, v14")
    a("v_max_f32 v13, v13, v15")
    a.label(f"{pfx}_FAST")
    for r in range(16):
        a(f"v_sub_f32 v{NMA+r}, 0, v12"); a(f"v_sub_f32 v{NMB+r}, 0, v13")
    a("s_nop 1")
    a(f"{M32} {vr(SA,16)}, {vr(KF,4)}, {vr(QA,4)}, {vr(NMA,16)}")
    a(f"{M32} {vr(SA,16)}, {vr(KF+4,4)}, {vr(QA+4,4)}, {vr(SA,16)}")
    a("s_mov_b32 s23, 0                     ; chunk c")
    a("s_mov_b32 s26, 147456")
    a("s_nop 8")
    def step(cur, tile):
        if cur == 'A':
            S_, P_, O_, L_ = SA, PA, OA, LA
            Sn, Qn, NMn, Po, Oo, Lo = SB, QB, NMB, PB, OB, LB
        else:
            S_, P_, O_, L_ = SB, PB, OB, LB
            Sn, Qn, NMn, Po, Oo, Lo = SA, QA, NMA, PA, OA, LA
        e = lambda r: a(f"v_exp_f32 v{S_+r}, v{S_+r}")
        c = lambda i: a(f"v_cvt_pk_bf16_f32 v{P_+i}, v{S_+2*i}, v{S_+2*i+1}")
        nreg, noff = ("v5", (tile + 1) * 4096) if tile < 3 else ("v6", 0)
        if cur == 'B': a("s_waitcnt lgkmcnt(1)")
        a(f"{M32} {vr(Sn,16)}, {vr(KF,4)}, {vr(Qn,4)}, {vr(NMn,16)}")
        e(0); e(1); e(2); e(3)
        a(f"{M32} {vr(Sn,16)}, {vr(KF+4,4)}, {vr(Qn+4,4)}, {vr(Sn,16)}")
        if cur == 'A':
            a(f"ds_read_b128 {vr(KF,4)}, {nreg} offset:{noff}")
            a(f"ds_read_b128 {vr(KF+4,4)}, {nreg} offset:{noff+1024}")
        c(0); c(1); e(4); e(5); e(6)
        if cur == 'B': a("s_waitcnt lgkmcnt(0)")
        a(f"{M32} {vr(Oo,16)}, {vr(VF+4,4)}, {vr(Po+4,4)}, {vr(Oo,16)}")
        if cur == 'A':
            a(f"ds_read_b128 {vr(VF+4,4)}, v5 offset:{tile*4096+3072}")
        e(7); c(2); c(3); e(8); e(9)
        a(f"{M16} {vr(Lo,4)}, {vr(ONES,4)}, {vr(Po+4,4)}, {vr(Lo,4)}")
        e(10); e(11)
        if cur == 'A': a("s_waitcnt lgkmcnt(3)")
        a(f"{M32} {vr(O_,16)}, {vr(VF,4)}, {vr(P_,4)}, {vr(O_,16)}")
        if cur == 'B':
            a(f"ds_read_b128 {vr(VF,4)}, {nreg} offset:{noff+2048}")
        c(4); c(5); e(12); e(13); e(14)
        a(f"{M16} {vr(L_,4)}, {vr(ONES,4)}, {vr(P_,4)}, {vr(L_,4)}")
        e(15); c(6); c(7)
    stamp(a, 4)
    import os
    if os.environ.get("AT_PRIO"):
        a("s_cmp_ge_u32 s20, 4")
        a(f"s_cbranch_scc0 {pfx}_NP")
        a("s_setprio 1")
        a.label(f"{pfx}_NP")
    a(".p2align 6")
    a.label(f"{pfx}_ML")
    for tile in range(3):
        step('A', tile); step('B', tile)
    if not os.environ.get("AT_ALLBAR"):
        a("s_cmp_ge_u32 s23, 8")
        a(f"s_cbranch_scc1 {pfx}_NB")
    a("s_cmp_ge_u32 s23, 7")
    a(f"s_cbranch_scc1 {pfx}_LB")
    a("s_waitcnt vmcnt(14)")
    a("s_barrier")
    a("s_cmp_eq_u32 s23, 0")
    a(f"s_cbranch_scc1 {pfx}_NB")
    a("s_mov_b32 m0, s24")
    a("s_add_u32 s24, s24, 16384")
    a("buffer_load_dwordx4 v4, s[12:15], s28 offen lds")
    a("buffer_load_dwordx4 v4, s[12:15], s28 offen offset:1024 lds")
    a("s_add_u32 s28, s28, 16384")
    a("s_cmp_ge_u32 s24, 163840")
    a("s_cselect_b32 s24, s27, s24")
    a(f"s_branch {pfx}_NB")
    a.label(f"{pfx}_LB")
    a("s_waitcnt vmcnt(0)")
    a("s_barrier")
    a.label(f"{pfx}_NB")
    step('A', 3); step('B', 3)
    a("s_add_u32 s26, s26, 16384")
    a("s_cmp_ge_u32 s26, 163840")
    a("s_cselect_b32 s26, 0, s26")
    a("v_mov_b32 v5, v6")
    a("v_add_u32 v6, s26, v4")
    a("s_add_u32 s23, s23, 1")
    a("s_cmp_lt_u32 s23, 16")
    a(f"s_cbranch_scc1 {pfx}_ML")
    stamp(a, 5)
    a(f"{M32} {vr(OB,16)}, {vr(VF+4,4)}, {vr(PB+4,4)}, {vr(OB,16)}")
    a(f"{M16} {vr(LB,4)}, {vr(ONES,4)}, {vr(PB+4,4)}, {vr(LB,4)}")
    a("s_lshl_b32 s34, s22, 18")
    a("s_lshl_b32 s35, s21, 2")
    a("s_lshl_b32 s33, s31, 1")
    a("s_add_u32 s35, s35, s33")
    a("s_lshl_b32 s35, s35, 13")
    a("s_add_u32 s34, s34, s35")
    a("s_lshl_b32 s35, s30, 11              ; 2st*1024")
    a("s_add_u32 s34, s34, s35")
    a(f"s_add_u32 s34, s34, {WS_O}")
    a("s_add_u32 s35, s34, 8192")
    a("v_and_b32 v7, 1, v3")
    a("v_lshlrev_b32 v7, 10, v7")
    a("v_lshrrev_b32 v12, 1, v3")
    a("v_lshl_add_u32 v7, v12, 8, v7")
    a("v_lshl_add_u32 v7, v2, 4, v7")
    a("s_waitcnt lgkmcnt(0)")
    for (O_, L_, P_, so) in ((OA, LA, PA, 34), (OB, LB, PB, 35)):
        a(f"v_rcp_f32 v12, v{L_}")
        a("s_nop 0")
        a(f"v_mul_f32 v12, v12, v{VG}")
        for r in range(16): a(f"v_mul_f32 v{O_+r}, v{O_+r}, v12")
        for p in range(2):
            a(f"v_cvt_pk_bf16_f32 v{P_+4*p}, v{O_+4*p}, v{O_+4*p+1}")
            a(f"v_cvt_pk_bf16_f32 v{P_+4*p+1}, v{O_+4*p+2}, v{O_+4*p+3}")
            a(f"v_cvt_pk_bf16_f32 v{P_+4*p+2}, v{O_+8+4*p}, v{O_+8+4*p+1}")
            a(f"v_cvt_pk_bf16_f32 v{P_+4*p+3}, v{O_+8+4*p+2}, v{O_+8+4*p+3}")
            a(f"buffer_store_dwordx4 {vr(P_+4*p,4)}, v7, s[12:15], s{so} offen offset:{p*512}{st_mod}")

def gen_attn(a, name="attn_kernel"):
    kernel_begin(a, name)
    a("s_cmp_ge_u32 s2, 128")
    a("s_cbranch_scc1 AT_END")
    stamp_init(a); stamp(a, 0)
    a(f"s_load_dwordx2 s[4:5], s[0:1], {KA['x']}")
    a(f"s_load_dwordx2 s[6:7], s[0:1], {KA['wq']}")
    a(f"s_load_dwordx2 s[40:41], s[0:1], {KA['ws']}")
    lane_ids(a)
    a("s_and_b32 s27, s2, 7")
    a("s_lshr_b32 s28, s2, 3")
    a("s_and_b32 s21, s27, 1")
    a("s_lshl_b32 s21, s21, 2")
    a("s_and_b32 s29, s28, 3")
    a("s_add_u32 s21, s21, s29")
    a("s_lshr_b32 s22, s27, 1")
    a("s_lshl_b32 s22, s22, 2")
    a("s_lshr_b32 s29, s28, 2")
    a("s_add_u32 s22, s22, s29")
    a("s_waitcnt lgkmcnt(0)")
    srd(a, 12, 40, SZ['ws'])
    attn_body(a, "AT")
    stamp(a, 6)
    if PROF["on"]: a("s_waitcnt vmcnt(0)")
    stamp(a, 7)
    stamp_flush(a, 1, 12, 20)
    a.label("AT_END")
    a("s_endpgm")
    return kernel_desc(name, 256)
```

```python
from asmlib import *

S, D, H, DH, F = 2048, 1024, 32, 32, 3584
KA = dict(x=0, wq=8, wk=16, wv=24, wo=32, bx=40, w1=48, b1=56, w2=64, b2=72, gw=80, out=88, dbg=96, ws=104)
SZ = dict(x=S*D*2, wq=D*D*2, wk=D*DH*2, wv=D*DH*2, wo=D*D*2, w1=S*F*2, b1=F*2, w2=F*S*2, b2=S*2, gw=D*2, out=S*D*2, dbg=256, ws=32 << 20)
WS_HT = 0
WS_U = 4 << 20
WS_O = 12 << 20
WS_KV = 16 << 20
WS_G = WS_KV + (256 << 10)
WS_KN = WS_G + 8192

LOG2E = 1.4426950408889634
import struct
def f2u(x): return struct.unpack("<I", struct.pack("<f", x))[0]
def fhex(x): return "0x%08x" % f2u(x)

def srd(a, d, p, size):
    a(f"s_mov_b32 s{d}, s{p}")
    a(f"s_and_b32 s{d+1}, s{p+1}, 0xffff")
    a(f"s_mov_b32 s{d+2}, 0x{size:x}")
    a(f"s_mov_b32 s{d+3}, 0x20000")

def kernel_begin(a, name):
    a(f".globl {name}")
    a(".p2align 8")
    a(f".type {name},@function")
    a.label(name)

def kernel_desc(name, nv, ns=102):
    acc = (nv + 3) // 4 * 4
    return f""".amdhsa_kernel {name}
  .amdhsa_next_free_vgpr {nv}
  .amdhsa_next_free_sgpr {ns}
  .amdhsa_accum_offset {acc}
  .amdhsa_group_segment_fixed_size 0
  .amdhsa_kernarg_size 112
  .amdhsa_user_sgpr_count 2
  .amdhsa_user_sgpr_kernarg_segment_ptr 1
  .amdhsa_system_sgpr_workgroup_id_x 1
.end_amdhsa_kernel
"""

def wave_reduce(a, regs, op="v_add_f32"):
    steps = ["row_shr:1", "row_shr:2", "row_shr:4", "row_shr:8", "row_bcast:15 row_mask:0xa", "row_bcast:31 row_mask:0xc"]
    pad = max(0, 2 - (len(regs) - 1))
    a("s_nop 1")
    for st in steps:
        for r in regs:
            m = st if "row_mask" in st else st + " row_mask:0xf"
            a(f"{op}_dpp v{r}, v{r}, v{r} {m} bank_mask:0xf")
        if pad: a(f"s_nop {pad-1}")

PROF = {"on": False}
WS_PROF = 24 << 20
def stamp(a, i):
    if not PROF["on"]: return
    if PROF.get("lite") and i not in (0, 13): return
    a("s_memtime s[94:95]")
    a("s_memrealtime s[96:97]")
    a("s_waitcnt lgkmcnt(0)")
    a(f"v_writelane_b32 v255, s94, {2*i}")
    a(f"v_writelane_b32 v255, s96, {2*i+1}")
def stamp_init(a):
    if not PROF["on"]: return
    a("v_mov_b32 v255, 0")
def stamp_flush(a, kidx, srd, wave_sreg):
    if not PROF["on"]: return
    a("s_mov_b64 exec, -1")
    a("s_lshl_b32 s94, s2, 3")
    a(f"s_add_u32 s94, s94, s{wave_sreg}")
    a(f"s_add_u32 s94, s94, {kidx*4096}")
    a("s_lshl_b32 s94, s94, 8")
    a(f"s_add_u32 s94, s94, {WS_PROF}")
    a("v_mbcnt_lo_u32_b32 v254, -1, 0")
    a("v_mbcnt_hi_u32_b32 v254, -1, v254")
    a("v_lshlrev_b32 v254, 2, v254")
    a(f"buffer_store_dword v255, v254, s[{srd}:{srd+3}], s94 offen")
```

```python
from common import *

def lane_ids(a):
    a("v_lshrrev_b32 v2, 6, v0")
    a("v_and_b32 v1, 63, v0")
    a("v_readfirstlane_b32 s20, v2")
    a("v_and_b32 v2, 15, v1")
    a("v_lshrrev_b32 v3, 4, v1")

def slot_advance(sreg, stride, nslots):
    return [f"s_add_u32 s{sreg}, s{sreg}, {stride}",
            f"s_cmp_eq_u32 s{sreg}, {stride*nslots}",
            f"s_cselect_b32 s{sreg}, 0, s{sreg}"]

M1_SLOT = 49152
M1_R = 3
M1_NS = 32
M1_ACC = 128
M1_SET = [(16, 44), (60, 88)]
def m1_acc(i, j): return M1_ACC + (i * 4 + j) * 4

def mlp1_loader(a, pfx):
    a("s_sub_u32 s27, s20, 4")
    a("v_lshrrev_b32 v4, 3, v1            ; l/8")
    a("v_and_b32 v5, 7, v1                ; l%8")
    a("v_and_b32 v6, 2, v4                ; ((row>>1)&1)<<1")
    a("v_xor_b32 v5, v5, v6")
    a("s_movk_i32 s28, 7168")
    a("v_mul_lo_u32 v4, v4, s28")
    a("s_mul_i32 s28, s22, 448")
    a("s_and_b32 s29, s22, 1")
    a("s_lshl_b32 s29, s29, 6")
    a("s_sub_u32 s28, s28, s29")
    a("s_lshl_b32 s29, s27, 7")
    a("s_add_u32 s28, s28, s29")
    a("v_add_u32 v4, s28, v4")
    a("v_lshl_add_u32 v6, v5, 4, v4       ; even i")
    a("v_xor_b32 v5, 4, v5")
    a("v_lshl_add_u32 v5, v5, 4, v4       ; odd i")
    for i in range(8):
        a(f"v_add_u32 v{8+i}, {i*8*7168 - (i%4)*1024}, v{6 if i%2==0 else 5}")
    a("s_lshl_b32 s28, s21, 19")
    a("s_lshl_b32 s29, s27, 12")
    a("s_add_u32 s28, s28, s29")
    a(f"s_add_u32 s28, s28, {WS_HT}")
    a("v_lshl_add_u32 v7, v1, 4, s28")
    a("s_lshl_b32 s30, s27, 13")
    a("s_add_u32 s31, s29, 32768")
    a("s_mov_b32 s24, 0")
    a("s_mov_b32 s25, 0")
    a("s_mov_b32 s26, 0")
    def issue():
        a("s_add_u32 m0, s24, s30")
        a("s_add_u32 s32, s24, s30")
        for i in range(4): a(f"buffer_load_dwordx4 v{8+i}, s[8:11], s25 offen offset:{i*1024} lds")
        a("s_add_u32 m0, s32, 4096")
        a("s_nop 0")
        for i in range(4, 8): a(f"buffer_load_dwordx4 v{8+i}, s[8:11], s25 offen offset:{(i%4)*1024} lds")
        a("s_add_u32 m0, s24, s31")
        a(f"s_add_u32 s25, s25, {64*7168}")
        for i in range(4): a(f"buffer_load_dwordx4 v7, s[12:15], s26 offen offset:{i*1024} lds")
        a("s_add_u32 s26, s26, 16384")
        for x in slot_advance(24, M1_SLOT, M1_R): a(x)
    n = 12
    for _ in range(M1_R): issue()
    a(f"s_waitcnt vmcnt({(M1_R-1)*n})")
    a("s_barrier")
    a(f"s_mov_b32 s23, {M1_NS - M1_R}")
    a.label(f"{pfx}_LDL")
    a(f"s_waitcnt vmcnt({(M1_R-2)*n})")
    a("s_barrier")
    issue()
    a("s_sub_u32 s23, s23, 1")
    a("s_cmp_lg_u32 s23, 0")
    a(f"s_cbranch_scc1 {pfx}_LDL")
    for i in range(M1_NS - M1_R, M1_NS - 1):
        left = (M1_NS - 1) - (i + 1)
        a(f"s_waitcnt vmcnt({left*n})")
        a("s_barrier")

def mlp1_compute(a, pfx):
    a("s_lshr_b32 s27, s20, 1             ; wr")
    a("s_and_b32 s28, s20, 1              ; wc")
    a("s_mul_i32 s29, s22, 14")
    a("s_lshl_b32 s30, s27, 3")
    a("s_add_u32 s30, s30, s29")
    a("s_add_u32 s31, s29, 6")
    a("s_add_u32 s31, s31, s27")
    a("s_lshl_b32 s32, s30, 5")
    a("s_lshl_b32 s33, s31, 5")
    a("v_lshlrev_b32 v4, 3, v3")
    for i in range(6):
        a(f"buffer_load_dwordx2 {vr(16+2*i,2)}, v4, s[16:19], s32 offen offset:{i*32}")
    a(f"buffer_load_dwordx2 {vr(28,2)}, v4, s[16:19], s33 offen")
    a("v_lshrrev_b32 v5, 2, v2            ; r")
    a("v_lshl_add_u32 v6, v3, 3, v5       ; 8g+r")
    a("v_lshlrev_b32 v6, 7, v6")
    a("v_and_b32 v7, 3, v1")
    a("v_lshl_add_u32 v6, v7, 3, v6       ; + c*8")
    a("v_lshrrev_b32 v5, 1, v5")
    a("v_and_b32 v7, 1, v3")
    a("v_lshl_add_u32 v5, v7, 1, v5       ; f")
    a("v_lshl_add_u32 v6, v5, 5, v6")
    a("s_and_b32 s34, s22, 1")
    a("s_lshl_b32 s34, s34, 1")
    a("s_lshl_b32 s35, s27, 3")
    a("s_add_u32 s35, s35, s34            ; jj0")
    a("s_add_u32 s36, s34, 6")
    a("s_add_u32 s36, s36, s27            ; jj6")
    for i in range(5):
        if i < 4: a(f"s_add_u32 s37, s35, {i}")
        else: a("s_mov_b32 s37, s36")
        a("s_and_b32 s38, s37, 3")
        a("s_lshl_b32 s38, s38, 5")
        a("s_lshr_b32 s37, s37, 2")
        a("s_lshl_b32 s37, s37, 13")
        a(f"v_xor_b32 v{10+i}, s38, v6")
        a(f"v_add_u32 v{10+i}, s37, v{10+i}")
    a("s_lshl_b32 s37, s28, 12")
    a("s_add_u32 s37, s37, 32768")
    a("v_lshl_add_u32 v15, v1, 4, s37")
    a("s_waitcnt vmcnt(0)")
    for i in range(7):
        b = m1_acc(i, 0)
        a(f"v_lshlrev_b32 v{b}, 16, v{16+2*i}")
        a(f"v_and_b32 v{b+1}, 0xffff0000, v{16+2*i}")
        a(f"v_lshlrev_b32 v{b+2}, 16, v{17+2*i}")
        a(f"v_and_b32 v{b+3}, 0xffff0000, v{17+2*i}")
        for j in range(1, 4):
            for r in range(4): a(f"v_mov_b32 v{m1_acc(i,j)+r}, v{b+r}")
    for i in range(6): a(f"v_mov_b32 v{4+i}, v{10+i}")
    a("s_mov_b32 s24, 0")
    def reads(st, t):
        A, B = M1_SET[st]
        o = []
        for j in range(4):
            o.append(f"ds_read_b128 {vr(B+4*j,4)}, v9 offset:{t*8192 + j*1024}")
        for i in range(7):
            reg = 4 + (i % 4) if i < 6 else 8
            off = (8192 if i in (4, 5) else 0) + t * 4096
            o.append(f"ds_read_b64_tr_b16 {vr(A+4*i,2)}, v{reg} offset:{off}")
            o.append(f"ds_read_b64_tr_b16 {vr(A+4*i+2,2)}, v{reg} offset:{off+512}")
        return o
    def mfmas(st):
        A, B = M1_SET[st]
        return [f"v_mfma_f32_16x16x32_bf16 {vr(m1_acc(i,j),4)}, {vr(A+4*i,4)}, {vr(B+4*j,4)}, {vr(m1_acc(i,j),4)}"
                for i in range(7) for j in range(4)]
    upd = slot_advance(24, M1_SLOT, M1_R) + [f"v_add_u32 v{4+i}, s24, v{10+i}" for i in range(6)]
    def stage(last=False):
        side = reads(1, 1)
        seq = interleave(mfmas(0), side + ([] if last else upd), 0, 27)
        for x in seq: a(x)
        a("s_waitcnt lgkmcnt(0)")
        if not last:
            a("s_barrier")
            seq = interleave(mfmas(1), reads(0, 0), 0, 20)
        else:
            seq = mfmas(1)
        for x in seq: a(x)
        if not last: a("s_waitcnt lgkmcnt(0)")
    stamp(a, 1)
    a("s_barrier")
    stamp(a, 2)
    for x in reads(0, 0): a(x)
    a(f"s_mov_b32 s23, {(M1_NS-2)//2}")
    a("s_waitcnt lgkmcnt(0)")
    a(".p2align 6")
    a.label(f"{pfx}_CL")
    stage(); stage()
    a("s_sub_u32 s23, s23, 1")
    a("s_cmp_lg_u32 s23, 0")
    a(f"s_cbranch_scc1 {pfx}_CL")
    stage(); stage(last=True)

def mlp1_epilogue(a, pfx, st_mod=""):
    c1 = -2.0 * 0.7978845608028654 * LOG2E
    c2 = c1 * 0.044715
    a(f"v_mov_b32 v4, {fhex(c1)}")
    a(f"v_mov_b32 v5, {fhex(c1)}")
    a(f"v_mov_b32 v6, {fhex(c2)}")
    a(f"v_mov_b32 v7, {fhex(c2)}")
    a(f"s_mul_i32 s32, s21, {112*8192}")
    a("s_lshl_b32 s33, s28, 12")
    a("s_add_u32 s32, s32, s33")
    a(f"s_add_u32 s32, s32, {WS_U}")
    a("s_lshr_b32 s33, s30, 1")
    a("s_lshl_b32 s33, s33, 13")
    a("s_add_u32 s33, s33, s32")
    a("s_lshr_b32 s34, s31, 1")
    a("s_lshl_b32 s34, s34, 13")
    a("s_add_u32 s34, s34, s32")
    a("s_lshl_b32 s35, s27, 3")
    a("s_add_u32 s34, s34, s35")
    a("v_lshlrev_b32 v8, 4, v1")
    a("s_nop 4")
    T = 16
    def gelu_block(accs, tb, ob):
        n = len(accs)
        pr = [(accs[q] + 2 * h, tb + 4 * q + 2 * h) for q in range(n) for h in range(2)]
        for u, t in pr: a(f"v_pk_mul_f32 {vr(t,2)}, {vr(u,2)}, {vr(u,2)}")
        for u, t in pr: a(f"v_pk_fma_f32 {vr(t,2)}, {vr(t,2)}, v[6:7], v[4:5]")
        for u, t in pr: a(f"v_pk_mul_f32 {vr(t,2)}, {vr(t,2)}, {vr(u,2)}")
        for u, t in pr:
            a(f"v_exp_f32 v{t}, v{t}"); a(f"v_exp_f32 v{t+1}, v{t+1}")
        for u, t in pr: a(f"v_pk_add_f32 {vr(t,2)}, {vr(t,2)}, 1.0 op_sel_hi:[1,0]")
        for u, t in pr:
            a(f"v_rcp_f32 v{t}, v{t}"); a(f"v_rcp_f32 v{t+1}, v{t+1}")
        for u, t in pr: a(f"v_pk_mul_f32 {vr(t,2)}, {vr(t,2)}, {vr(u,2)}")
        for k, (u, t) in enumerate(pr): a(f"v_cvt_pk_bf16_f32 v{ob+k}, v{t}, v{t+1}")
    blk = 0
    for p in range(3):
        for j in range(0, 4, 2):
            ob = 48 + (blk % 4) * 8
            gelu_block([m1_acc(2*p, j), m1_acc(2*p+1, j), m1_acc(2*p, j+1), m1_acc(2*p+1, j+1)], T, ob)
            a(f"buffer_store_dwordx4 {vr(ob,4)}, v8, s[12:15], s33 offen offset:{j*1024}{st_mod}")
            a(f"buffer_store_dwordx4 {vr(ob+4,4)}, v8, s[12:15], s33 offen offset:{(j+1)*1024}{st_mod}")
            blk += 1
        a("s_add_u32 s33, s33, 8192")
    ob = 48 + (blk % 4) * 8
    gelu_block([m1_acc(6, j) for j in range(4)], T, ob)
    for j in range(4):
        a(f"buffer_store_dwordx2 {vr(ob+2*j,2)}, v8, s[12:15], s34 offen offset:{j*1024}{st_mod}")

def gen_mlp1(a, name="mlp1_kernel"):
    kernel_begin(a, name)
    a("s_cmp_ge_u32 s2, 128")
    a("s_cbranch_scc1 M1_END")
    stamp_init(a); stamp(a, 0)
    a(f"s_load_dwordx2 s[4:5], s[0:1], {KA['w1']}")
    a(f"s_load_dwordx2 s[6:7], s[0:1], {KA['ws']}")
    a(f"s_load_dwordx2 s[40:41], s[0:1], {KA['b1']}")
    lane_ids(a)
    a("s_and_b32 s27, s2, 7")
    a("s_lshr_b32 s28, s2, 3")
    a("s_and_b32 s21, s27, 1")
    a("s_lshl_b32 s21, s21, 2")
    a("s_and_b32 s29, s28, 3")
    a("s_add_u32 s21, s21, s29")
    a("s_lshr_b32 s22, s27, 1")
    a("s_lshl_b32 s22, s22, 2")
    a("s_lshr_b32 s29, s28, 2")
    a("s_add_u32 s22, s22, s29")
    a("s_waitcnt lgkmcnt(0)")
    srd(a, 8, 4, SZ['w1']); srd(a, 12, 6, SZ['ws']); srd(a, 16, 40, SZ['b1'])
    a("s_cmp_ge_u32 s20, 4")
    a("s_cbranch_scc1 M1_LOADER")
    mlp1_compute(a, "M1")
    stamp(a, 3)
    mlp1_epilogue(a, "M1")
    stamp(a, 4)
    if PROF["on"]: a("s_waitcnt vmcnt(0)")
    stamp(a, 5)
    stamp_flush(a, 2, 12, 20)
    a("s_branch M1_END")
    a.label("M1_LOADER")
    mlp1_loader(a, "M1")
    a.label("M1_END")
    a("s_endpgm")
    return kernel_desc(name, 256)

M2_SLOT = 32768
import os
M2_R = int(os.environ.get('M2_R', 4))
M2_NS1, M2_NS2 = 56, 16
M2_ACC = 128
M2_SET = [(16, 32), (48, 64)]
def m2_acc(i, j): return M2_ACC + (i * 4 + j) * 4

def mlp2_loader(a, pfx):
    a("s_sub_u32 s27, s20, 4              ; lw")
    a("v_lshrrev_b32 v4, 3, v1            ; l/8")
    a("v_and_b32 v5, 7, v1")
    a("v_and_b32 v6, 6, v4                ; ((row>>1)&3)<<1")
    a("v_xor_b32 v5, v5, v6")
    a("s_lshr_b32 s28, s27, 1")
    a("s_lshl_b32 s28, s28, 5")
    a("v_add_u32 v4, s28, v4")
    a("s_and_b32 s29, s27, 1              ; cb")
    a("s_lshl_b32 s30, s29, 7")
    a("v_lshl_add_u32 v5, v5, 4, s30")
    a("s_lshl_b32 s31, s22, 8")
    a("v_lshl_add_u32 v6, v4, 12, v5")
    a("v_add_u32 v6, s31, v6")
    for i in range(4): a(f"v_add_u32 v{8+i}, {i*(8*4096-1024)}, v6")
    a("s_lshl_b32 s31, s21, 8")
    a("v_lshl_add_u32 v6, v4, 11, v5")
    a("v_add_u32 v6, s31, v6")
    for i in range(4): a(f"v_add_u32 v{12+i}, {i*(8*2048-1024)}, v6")
    a("s_lshl_b32 s32, s27, 12            ; lw*4096")
    a(f"s_mul_i32 s31, s21, {112*8192}")
    a("s_add_u32 s31, s31, s32")
    a(f"s_add_u32 s31, s31, {WS_U}")
    a("v_lshl_add_u32 v7, v1, 4, s31")
    a("s_lshl_b32 s31, s22, 18")
    a("s_add_u32 s31, s31, s32")
    a(f"s_add_u32 s31, s31, {WS_O}")
    a("v_lshl_add_u32 v16, v1, 4, s31")
    a("s_lshl_b32 s30, s29, 13")
    a("s_lshl_b32 s28, s28, 7")
    a("s_add_u32 s30, s30, s28")
    a("s_add_u32 s31, s32, 16384")
    a("s_mov_b32 s24, 0")
    a("s_mov_b32 s25, 0")
    a("s_mov_b32 s26, 0")
    def issue(part):
        tb, sr_, fv, ts = (8, 8, 7, 64*4096) if part == 1 else (12, 44, 16, 64*2048)
        a("s_add_u32 m0, s24, s30")
        a("s_nop 0")
        for i in range(4): a(f"buffer_load_dwordx4 v{tb+i}, s[{sr_}:{sr_+3}], s25 offen offset:{i*1024} lds")
        a("s_add_u32 m0, s24, s31")
        a(f"s_add_u32 s25, s25, {ts}")
        for i in range(4): a(f"buffer_load_dwordx4 v{fv}, s[12:15], s26 offen offset:{i*1024} lds")
        a("s_add_u32 s26, s26, 16384")
        for x in slot_advance(24, M2_SLOT, M2_R): a(x)
    n = 8; R = M2_R; NS = M2_NS1 + M2_NS2
    for _ in range(R): issue(1)
    a(f"s_waitcnt vmcnt({(R-1)*n})")
    a("s_barrier")
    a(f"s_mov_b32 s23, {M2_NS1 - R}")
    a.label(f"{pfx}_LDL1")
    a(f"s_waitcnt vmcnt({(R-2)*n})")
    a("s_barrier")
    issue(1)
    a("s_sub_u32 s23, s23, 1")
    a("s_cmp_lg_u32 s23, 0")
    a(f"s_cbranch_scc1 {pfx}_LDL1")
    a("s_mov_b32 s25, 0")
    a("s_mov_b32 s26, 0")
    a(f"s_mov_b32 s23, {M2_NS2}")
    a.label(f"{pfx}_LDL2")
    a(f"s_waitcnt vmcnt({(R-2)*n})")
    a("s_barrier")
    issue(2)
    a("s_sub_u32 s23, s23, 1")
    a("s_cmp_lg_u32 s23, 0")
    a(f"s_cbranch_scc1 {pfx}_LDL2")
    for i in range(NS - R, NS - 1):
        left = (NS - 1) - (i + 1)
        a(f"s_waitcnt vmcnt({left*n})")
        a("s_barrier")

def mlp2_compute(a, pfx):
    a("s_lshr_b32 s27, s20, 1")
    a("s_and_b32 s28, s20, 1")
    a("s_lshl_b32 s29, s22, 7")
    a("s_lshl_b32 s30, s28, 6")
    a("s_add_u32 s29, s29, s30")
    a("v_add_u32 v4, s29, v2")
    a("v_lshlrev_b32 v5, 1, v4")
    a("v_lshlrev_b32 v6, 2, v4")
    a(f"s_mov_b32 s30, {WS_G}")
    for j in range(4):
        a(f"buffer_load_ushort v{84+j}, v5, s[16:19], 0 offen offset:{j*32}")
        a(f"buffer_load_dword v{88+j}, v6, s[12:15], s30 offen offset:{j*64}")
    a("v_lshlrev_b32 v92, 11, v4")
    a("s_lshl_b32 s30, s21, 8")
    a("s_lshl_b32 s31, s27, 7")
    a("s_add_u32 s30, s30, s31")
    a("v_add_u32 v92, s30, v92")
    a("v_and_b32 v5, 1, v3")
    a("v_lshl_add_u32 v92, v5, 5, v92")
    a("v_lshrrev_b32 v5, 1, v3")
    a("v_lshl_add_u32 v92, v5, 4, v92")
    a("v_lshrrev_b32 v5, 2, v1            ; 4g + r = l/4")
    a("v_lshlrev_b32 v6, 7, v5")
    a("v_and_b32 v7, 3, v1")
    a("v_lshl_add_u32 v6, v7, 3, v6")
    a("v_lshrrev_b32 v5, 1, v5")
    a("v_and_b32 v5, 3, v5")
    a("v_lshl_add_u32 v6, v5, 5, v6")
    a("s_lshl_b32 s30, s28, 13")
    a("s_lshl_b32 s31, s27, 13")
    for j in range(4):
        a(f"v_xor_b32 v7, {j*32}, v6")
        a(f"v_add_u32 v{10+j}, s30, v7")
        a(f"v_add_u32 v{94+j}, s31, v7")
    a("s_lshl_b32 s30, s27, 12")
    a("s_add_u32 s30, s30, 16384")
    a("v_lshl_add_u32 v14, v1, 4, s30")
    a("s_lshl_b32 s30, s28, 12")
    a("s_add_u32 s30, s30, 16384")
    a("v_lshl_add_u32 v98, v1, 4, s30")
    for i in range(5): a(f"v_mov_b32 v{4+i}, v{10+i}")
    for r in range(64): a(f"v_mov_b32 v{M2_ACC+r}, 0")
    a("s_mov_b32 s24, 0")
    def reads(st, t):
        Fb, Tb = M2_SET[st]
        o = []
        for j in range(4):
            o.append(f"ds_read_b128 {vr(Fb+4*j,4)}, v8 offset:{t*8192 + j*1024}")
            o.append(f"ds_read_b64_tr_b16 {vr(Tb+4*j,2)}, v{4+j} offset:{t*4096}")
            o.append(f"ds_read_b64_tr_b16 {vr(Tb+4*j+2,2)}, v{4+j} offset:{t*4096+2048}")
        return o
    def mfmas(st, part):
        Fb, Tb = M2_SET[st]
        A, B = (Fb, Tb) if part == 1 else (Tb, Fb)
        return [f"v_mfma_f32_16x16x32_bf16 {vr(m2_acc(i,j),4)}, {vr(A+4*i,4)}, {vr(B+4*j,4)}, {vr(m2_acc(i,j),4)}"
                for i in range(4) for j in range(4)]
    def stage(part, last=False, nextpart=None):
        base = 10 if (nextpart or part) == 1 else 94
        upd = slot_advance(24, M2_SLOT, M2_R) + [f"v_add_u32 v{4+i}, s24, v{base+i}" for i in range(5)]
        rd = reads(1, 1)
        m = mfmas(0, part)
        seq = interleave(m, rd, 0, 10)
        if not last:
            out = []; k = 0; cnt = 0
            for x in seq:
                out.append(x)
                if x.startswith("v_mfma"):
                    cnt += 1
                    if cnt > 10:
                        for _ in range(2):
                            if k < len(upd): out.append(upd[k]); k += 1
            assert k == len(upd)
            seq = out
        for x in seq: a(x)
        a("s_waitcnt lgkmcnt(0)")
        if not last:
            a("s_barrier")
            seq = interleave(mfmas(1, part), reads(0, 0), 0, 10)
        else:
            seq = mfmas(1, part)
        for x in seq: a(x)
        if not last: a("s_waitcnt lgkmcnt(0)")
    stamp(a, 6)
    a("s_barrier")
    stamp(a, 7)
    for x in reads(0, 0): a(x)
    a(f"s_mov_b32 s23, {(M2_NS1-2)//2}")
    a("s_waitcnt vmcnt(0) lgkmcnt(0)")
    for j in range(4):
        a(f"v_sub_f32 v{88+j}, 1.0, v{88+j}")
        a(f"v_lshlrev_b32 v{84+j}, 16, v{84+j}")
    for j in range(4):
        a(f"v_mul_f32 v{84+j}, v{84+j}, v{88+j}")
    a(".p2align 6")
    a.label(f"{pfx}_CL1")
    stage(1); stage(1)
    a("s_sub_u32 s23, s23, 1")
    a("s_cmp_lg_u32 s23, 0")
    a(f"s_cbranch_scc1 {pfx}_CL1")
    stage(1); stage(1, nextpart=2)
    stamp(a, 8)
    a("s_nop 3")
    for i in range(4):
        for j in range(4):
            for r in range(4):
                x = m2_acc(i, j) + r
                a(f"v_fma_f32 v{x}, v{x}, v{88+j}, v{84+j}")
    a(f"s_mov_b32 s23, {(M2_NS2-2)//2}")
    a(".p2align 6")
    a.label(f"{pfx}_CL2")
    stage(2); stage(2)
    a("s_sub_u32 s23, s23, 1")
    a("s_cmp_lg_u32 s23, 0")
    a(f"s_cbranch_scc1 {pfx}_CL2")
    stage(2); stage(2, last=True)
    stamp(a, 9)
    a("s_nop 3")
    a("s_mov_b32 s30, 0")
    for j in range(4):
        for ip in range(2):
            X, Y = m2_acc(2*ip, j), m2_acc(2*ip+1, j)
            o = 16 + (j*2+ip) * 4
            a(f"v_cvt_pk_bf16_f32 v{o}, v{X}, v{X+1}")
            a(f"v_cvt_pk_bf16_f32 v{o+1}, v{X+2}, v{X+3}")
            a(f"v_cvt_pk_bf16_f32 v{o+2}, v{Y}, v{Y+1}")
            a(f"v_cvt_pk_bf16_f32 v{o+3}, v{Y+2}, v{Y+3}")
            a("s_nop 1")
            a(f"v_permlane16_swap_b32 v{o}, v{o+2}")
            a(f"v_permlane16_swap_b32 v{o+1}, v{o+3}")
            a(f"buffer_store_dwordx4 {vr(o,4)}, v92, s[48:51], s30 offen offset:{ip*64}")
        a(f"s_add_u32 s30, s30, {16*2048}")

def gen_mlp2(a, name="mlp2_kernel"):
    kernel_begin(a, name)
    a("s_cmp_ge_u32 s2, 128")
    a("s_cbranch_scc1 M2_END")
    stamp_init(a); stamp(a, 0)
    a(f"s_load_dwordx2 s[4:5], s[0:1], {KA['w2']}")
    a(f"s_load_dwordx2 s[6:7], s[0:1], {KA['ws']}")
    a(f"s_load_dwordx2 s[40:41], s[0:1], {KA['b2']}")
    a(f"s_load_dwordx2 s[42:43], s[0:1], {KA['wo']}")
    a(f"s_load_dwordx2 s[52:53], s[0:1], {KA['out']}")
    lane_ids(a)
    a("s_and_b32 s27, s2, 7")
    a("s_lshr_b32 s28, s2, 3")
    a("s_and_b32 s21, s27, 1")
    a("s_lshl_b32 s21, s21, 2")
    a("s_and_b32 s29, s28, 3")
    a("s_add_u32 s21, s21, s29")
    a("s_lshr_b32 s22, s27, 1")
    a("s_lshl_b32 s22, s22, 2")
    a("s_lshr_b32 s29, s28, 2")
    a("s_add_u32 s22, s22, s29")
    a("s_waitcnt lgkmcnt(0)")
    srd(a, 8, 4, SZ['w2']); srd(a, 12, 6, SZ['ws']); srd(a, 16, 40, SZ['b2']); srd(a, 44, 42, SZ['wo']); srd(a, 48, 52, SZ['out'])
    a("s_cmp_ge_u32 s20, 4")
    a("s_cbranch_scc1 M2_LOADER")
    mlp2_compute(a, "M2")
    stamp(a, 10)
    if PROF["on"]: a("s_waitcnt vmcnt(0)")
    stamp(a, 11)
    stamp_flush(a, 3, 12, 20)
    a("s_branch M2_END")
    a.label("M2_LOADER")
    mlp2_loader(a, "M2")
    a.label("M2_END")
    a("s_endpgm")
    return kernel_desc(name, 256)
```

```python
from common import *

K1_LDS = 65536 + 8 * 2112 + 16384
def gen_k1(a, name="prep_kernel"):
    LW, LH, LP = 0, 65536, 65536 + 8 * 2112
    kernel_begin(a, name)
    a("s_cmp_ge_u32 s2, 256")
    a("s_cbranch_scc1 K1_END")
    stamp_init(a); stamp(a, 0)
    a("s_and_b32 s24, s2, 7")
    a("s_lshr_b32 s25, s2, 3")
    a("s_and_b32 s26, s25, 1          ; kv")
    a("s_lshr_b32 s25, s25, 1")
    a("s_lshl_b32 s24, s24, 4")
    a("s_add_u32 s27, s24, s25        ; rg")
    a("s_lshl_b32 s28, s26, 3")
    a("s_add_u32 s28, s28, 16")
    a(f"s_load_dwordx2 s[4:5], s[0:1], {KA['x']}")
    a("s_load_dwordx2 s[6:7], s[0:1], s28")
    a(f"s_load_dwordx2 s[30:31], s[0:1], {KA['gw']}")
    a(f"s_load_dwordx2 s[32:33], s[0:1], {KA['ws']}")
    a("v_lshrrev_b32 v1, 6, v0")
    a("v_and_b32 v2, 63, v0           ; lane")
    a("v_readfirstlane_b32 s29, v1")
    a("v_lshlrev_b32 v3, 4, v2        ; lane*16")
    a("v_and_b32 v4, 15, v2           ; c16")
    a("v_lshrrev_b32 v5, 4, v2        ; g")
    a("s_lshl_b32 s34, s27, 4         ; s0 = 16*rg")
    a("s_lshl_b32 s35, s26, 3")
    a("s_add_u32 s35, s35, s34")
    a("s_add_u32 s36, s35, s29")
    a("s_lshl_b32 s37, s36, 11")
    a("v_add_u32 v6, s34, v4")
    a("v_lshlrev_b32 v6, 11, v6")
    a("v_lshl_add_u32 v6, v5, 4, v6")
    a("s_lshl_b32 s38, s29, 8         ; w*256 bytes")
    a("s_lshl_b32 s39, s29, 13")
    a("s_waitcnt lgkmcnt(0)")
    srd(a, 8, 4, SZ['x']); srd(a, 12, 6, SZ['wk']); srd(a, 16, 30, SZ['gw']); srd(a, 20, 32, SZ['ws'])
    a("buffer_load_dwordx4 v[8:11], v3, s[8:11], s37 offen")
    a("buffer_load_dwordx4 v[12:15], v3, s[8:11], s37 offen offset:1024")
    a("buffer_load_dwordx4 v[16:19], v3, s[16:19], 0 offen")
    a("buffer_load_dwordx4 v[20:23], v3, s[16:19], 0 offen offset:1024")
    a("s_mov_b32 m0, s39")
    a("s_add_u32 s40, s39, 4096")
    for i in range(4):
        a(f"buffer_load_dwordx4 v3, s[12:15], s39 offen offset:{i*1024} lds")
    a("s_mov_b32 m0, s40")
    a("s_nop 0")
    for i in range(4):
        a(f"buffer_load_dwordx4 v3, s[12:15], s40 offen offset:{i*1024} lds")
    XF = 24
    for t in range(4):
        a(f"buffer_load_dwordx4 {vr(XF+4*t,4)}, v6, s[8:11], s38 offen offset:{t*64}")
    XV, GV = 40, 56
    a("s_waitcnt vmcnt(12)")
    stamp(a, 1)
    for i in range(8):
        a(f"v_lshlrev_b32 v{XV+2*i}, 16, v{8+i}")
        a(f"v_and_b32 v{XV+2*i+1}, 0xffff0000, v{8+i}")
    for i in range(8):
        a(f"v_lshlrev_b32 v{GV+2*i}, 16, v{16+i}")
        a(f"v_and_b32 v{GV+2*i+1}, 0xffff0000, v{16+i}")
    a(f"v_add_f32 v72, v{XV}, v{XV+1}")
    a(f"v_mul_f32 v73, v{XV}, v{GV}")
    a(f"v_add_f32 v74, v{XV+2}, v{XV+3}")
    a(f"v_mul_f32 v75, v{XV+1}, v{GV+1}")
    for i in range(4, 16, 2):
        a(f"v_add_f32 v72, v72, v{XV+i}")
        a(f"v_add_f32 v74, v74, v{XV+i+1}")
    for i in range(2, 16, 2):
        a(f"v_fmac_f32 v73, v{XV+i}, v{GV+i}")
        a(f"v_fmac_f32 v75, v{XV+i+1}, v{GV+i+1}")
    a("v_add_f32 v72, v72, v74")
    a("v_add_f32 v73, v73, v75")
    wave_reduce(a, [72, 73])
    a("s_nop 0")
    a("v_readlane_b32 s41, v72, 63")
    a("v_readlane_b32 s42, v73, 63")
    a("s_nop 1")
    a(f"v_mov_b32 v74, {fhex(-1.0/1024)}")
    a("v_mul_f32 v74, s41, v74         ; -mean")
    for i in range(16):
        a(f"v_add_f32 v{XV+i}, v{XV+i}, v74")
    a(f"v_mul_f32 v72, v{XV}, v{XV}")
    a(f"v_mul_f32 v73, v{XV+1}, v{XV+1}")
    for i in range(2, 16, 2):
        a(f"v_fmac_f32 v72, v{XV+i}, v{XV+i}")
        a(f"v_fmac_f32 v73, v{XV+i+1}, v{XV+i+1}")
    a("v_add_f32 v72, v72, v73")
    wave_reduce(a, [72])
    a("s_nop 0")
    a("v_readlane_b32 s41, v72, 63")
    a(f"v_mov_b32 v74, {fhex(1.0/1024)}")
    a(f"v_mov_b32 v75, {fhex(1e-5)}")
    a("v_fma_f32 v74, s41, v74, v75")
    a("v_rsq_f32 v74, v74")
    a(f"v_mov_b32 v75, {fhex(-LOG2E)}")
    a("v_mul_f32 v75, s42, v75")
    a("v_exp_f32 v75, v75")
    for i in range(16):
        a(f"v_mul_f32 v{XV+i}, v{XV+i}, v74")
    a("v_add_f32 v75, 1.0, v75")
    a("v_rcp_f32 v75, v75")
    for i in range(8):
        a(f"v_cvt_pk_bf16_f32 v{8+i}, v{XV+2*i}, v{XV+2*i+1}")
    a(f"s_mul_i32 s43, s29, 2112")
    a(f"s_add_u32 s43, s43, {LH}")
    a("v_add_u32 v7, s43, v3")
    a("ds_write_b128 v7, v[8:11]")
    a("ds_write_b128 v7, v[12:15] offset:1024")
    a("s_lshl_b32 s44, s36, 2")
    a(f"s_add_u32 s44, s44, {WS_G}")
    a("v_mov_b32 v76, 0")
    a("s_mov_b64 exec, 1")
    a("buffer_store_dword v75, v76, s[20:23], s44 offen")
    a("s_mov_b64 exec, -1")
    a("v_lshrrev_b32 v76, 2, v4")
    a("v_lshl_add_u32 v76, v5, 3, v76      ; 8g + r")
    a("v_lshlrev_b32 v76, 6, v76")
    a("v_and_b32 v77, 3, v2")
    a("v_lshl_add_u32 v76, v77, 3, v76")
    a("v_add_u32 v76, s39, v76")
    stamp(a, 2)
    a("s_waitcnt vmcnt(1)")
    WF = 80
    for t in range(4):
        for ct in range(2):
            b = WF + (t * 2 + ct) * 4
            a(f"ds_read_b64_tr_b16 {vr(b,2)}, v76 offset:{t*2048 + ct*32}")
            a(f"ds_read_b64_tr_b16 {vr(b+2,2)}, v76 offset:{t*2048 + ct*32 + 256}")
    AC = 112
    a("s_cmp_eq_u32 s26, 1")
    a("s_waitcnt lgkmcnt(0)")
    a("s_cbranch_scc1 K1_V")
    for t in range(4):
        for ct in range(2):
            b = WF + (t * 2 + ct) * 4
            c = "0" if t == 0 else vr(AC + 4 * ct, 4)
            a(f"v_mfma_f32_16x16x32_bf16 {vr(AC+4*ct,4)}, {vr(b,4)}, {vr(XF+4*t,4)}, {c}")
    a("s_branch K1_J")
    a.label("K1_V")
    for t in range(4):
        for ct in range(2):
            b = WF + (t * 2 + ct) * 4
            c = "0" if t == 0 else vr(AC + 4 * ct, 4)
            a(f"v_mfma_f32_16x16x32_bf16 {vr(AC+4*ct,4)}, {vr(XF+4*t,4)}, {vr(b,4)}, {c}")
    a.label("K1_J")
    a("s_lshl_b32 s45, s29, 11")
    a(f"s_add_u32 s45, s45, {LP}")
    a("v_add_u32 v77, s45, v3")
    a("s_nop 7")
    a(f"ds_write_b128 v77, {vr(AC,4)}")
    a(f"ds_write_b128 v77, {vr(AC+4,4)} offset:1024")
    a("s_waitcnt lgkmcnt(0)")
    stamp(a, 3)
    a("s_barrier")
    stamp(a, 4)
    a("v_lshrrev_b32 v76, 2, v4")
    a("v_mul_u32_u24 v76, 2112, v76")
    a("v_lshl_add_u32 v76, v5, 5, v76")
    a("v_and_b32 v77, 3, v2")
    a("v_lshl_add_u32 v76, v77, 3, v76")
    a(f"s_add_u32 s45, s38, {LH}")
    a("v_add_u32 v76, s45, v76")
    for p in range(2):
        a(f"ds_read_b64_tr_b16 {vr(8+4*p,2)}, v76 offset:{p*128}")
        a(f"ds_read_b64_tr_b16 {vr(10+4*p,2)}, v76 offset:{p*128 + 4*2112}")
    a("s_lshl_b32 s46, s29, 19")
    a("s_lshr_b32 s47, s35, 5")
    a("s_lshl_b32 s47, s47, 13")
    a("s_add_u32 s46, s46, s47")
    a("s_and_b32 s47, s35, 31")
    a("s_lshl_b32 s47, s47, 5          ; (sL%32)/8*256")
    a("s_add_u32 s46, s46, s47")
    a(f"s_add_u32 s46, s46, {WS_HT}")
    a("s_add_u32 s47, s46, 4096")
    a("v_lshlrev_b32 v77, 10, v5")
    a("v_lshl_add_u32 v77, v4, 4, v77")
    a("s_waitcnt lgkmcnt(2)")
    a("buffer_store_dwordx4 v[8:11], v77, s[20:23], s46 offen")
    a("s_waitcnt lgkmcnt(0)")
    a("buffer_store_dwordx4 v[12:15], v77, s[20:23], s47 offen")
    a("s_cmp_lg_u32 s29, 0")
    a("s_cbranch_scc1 K1_FIN")
    a(f"v_add_u32 v76, {LP}, v3")
    PR = 24
    for w in range(8):
        for ct in range(2):
            a(f"ds_read_b128 {vr(PR + (w*2+ct)*4, 4)}, v76 offset:{w*2048 + ct*1024}")
    a("s_waitcnt lgkmcnt(0)")
    for st in (1, 2, 4):
        for w in range(0, 8, 2 * st):
            for j in range(8):
                a(f"v_add_f32 v{PR + w*8 + j}, v{PR + w*8 + j}, v{PR + (w+st)*8 + j}")
    for j in range(4):
        a(f"v_cvt_pk_bf16_f32 v{16+j}, v{PR+2*j}, v{PR+2*j+1}")
    a("s_lshr_b32 s46, s27, 1")
    a("s_lshl_b32 s46, s46, 12")
    a(f"s_add_u32 s46, s46, {WS_KV}")
    a("s_and_b32 s47, s27, 1           ; half16")
    a("v_and_b32 v76, 1, v5")
    a("v_lshlrev_b32 v76, 9, v76       ; h*32*16")
    a("v_lshl_add_u32 v76, v4, 4, v76  ; + c*16")
    a("v_lshrrev_b32 v77, 1, v5")
    a("v_lshl_add_u32 v76, v77, 3, v76 ; + q8*8")
    a("s_cmp_eq_u32 s26, 1")
    a("s_cbranch_scc1 K1_VS")
    a("s_lshl_b32 s47, s47, 8")
    a("s_add_u32 s46, s46, s47")
    a("buffer_store_dwordx2 v[16:17], v76, s[20:23], s46 offen")
    a("buffer_store_dwordx2 v[18:19], v76, s[20:23], s46 offen offset:1024")
    for j in range(4):
        a(f"v_lshlrev_b32 v{PR+2*j}, 16, v{16+j}")
        a(f"v_and_b32 v{PR+2*j+1}, 0xffff0000, v{16+j}")
    a(f"v_mul_f32 v20, v{PR}, v{PR}")
    for j in range(1, 8):
        a(f"v_fmac_f32 v20, v{PR+j}, v{PR+j}")
    a("v_mov_b32 v21, v20")
    a("s_nop 1")
    a("v_permlane16_swap_b32 v20, v21")
    a("v_add_f32 v20, v20, v21")
    a("v_mov_b32 v21, v20")
    a("s_nop 1")
    a("v_permlane32_swap_b32 v20, v21")
    a("v_add_f32 v20, v20, v21")
    wave_reduce(a, [20], op="v_max_f32")
    a("s_lshl_b32 s46, s27, 2")
    a(f"s_add_u32 s46, s46, {WS_KN}")
    a("v_mov_b32 v21, 0")
    a("s_mov_b32 exec_lo, 0")
    a("s_mov_b32 exec_hi, 0x80000000")
    a("buffer_store_dword v20, v21, s[20:23], s46 offen")
    a("s_branch K1_FIN")
    a.label("K1_VS")
    a("s_lshl_b32 s47, s47, 10")
    a("s_add_u32 s46, s46, s47")
    a("buffer_store_dwordx2 v[16:17], v76, s[20:23], s46 offen offset:2048")
    a("buffer_store_dwordx2 v[18:19], v76, s[20:23], s46 offen offset:2304")
    a.label("K1_FIN")
    if PROF["on"]:
        stamp(a, 5)
        a("s_waitcnt vmcnt(0)")
        stamp(a, 6)
        stamp_flush(a, 0, 20, 29)
    a.label("K1_END")
    a("s_endpgm")
    return kernel_desc(name, 256 if PROF["on"] else 128)
```

```python
import os
from common import *

def env(n, d): return int(os.environ.get(n, d))

WS_FL = 17 << 20
FL_EPOCH = WS_FL
FL_F1 = WS_FL + 0x10000
FL_F1B = WS_FL + 0x20000
FL_F2 = WS_FL + 0x80000
FL_F3 = WS_FL + 0x40000
FL_F4 = WS_FL + 0x50000
WS_Y = 32 << 20
WS_SIZE = 48 << 20
P = dict(x=64, wq=66, wk=68, wv=70, wo=72, w1=76, b1=78, w2=80, b2=82, gw=84, out=86, ws=90)
TAG, XCD, IDX = 92, 93, 98
M32 = "v_mfma_f32_32x32x16_bf16"
M16 = "v_mfma_f32_16x16x32_bf16"
SC = " sc1"
NTW = " nt" if env("NT_W", 0) else ""
NTQ = " nt" if env("NT_Q", 0) else ""
NTP = " nt" if env("NT_P", 0) else ""
NTX = " nt" if env("NT_X", 1) else ""
_uid = [0]

def poll(a, loads, tmp, name):
    _uid[0] += 1
    L = f"{name}_{_uid[0]}"
    a("s_mov_b32 s99, 0x40000")
    a.label(f"{L}_P")
    for k, (v, so, off) in enumerate(loads):
        a(f"buffer_load_dword v{tmp+k}, v{v}, s[12:15], {so} offen offset:{off} sc1")
    a("s_waitcnt vmcnt(0)")
    for k in range(len(loads)):
        a(f"v_xor_b32 v{tmp+k}, s{TAG}, v{tmp+k}")
    for k in range(1, len(loads)):
        a(f"v_or_b32 v{tmp}, v{tmp}, v{tmp+k}")
    a(f"v_cmp_ne_u32 vcc, 0, v{tmp}")
    a("s_sub_u32 s99, s99, 1")
    a(f"s_cbranch_vccz {L}_D")
    a("s_sleep 1")
    a("s_cmp_lg_u32 s99, 0")
    a(f"s_cbranch_scc1 {L}_P")
    a.label(f"{L}_D")

def flag_store(a, vaddr, vdat, soff, mask):
    a(f"v_mov_b32 v{vdat}, s{TAG}")
    a(f"s_mov_b64 exec, {mask}")
    a(f"buffer_store_dword v{vdat}, v{vaddr}, s[12:15], {soff} offen sc1")
    a("s_mov_b64 exec, -1")

def tag_finish(a):
    a(f"s_mul_i32 s{TAG}, s{TAG}, 1664525")
    a(f"s_add_u32 s{TAG}, s{TAG}, 1013904223")

def slot_advance(sreg, stride, nslots):
    return [f"s_add_u32 s{sreg}, s{sreg}, {stride}",
            f"s_cmp_eq_u32 s{sreg}, {stride*nslots}",
            f"s_cselect_b32 s{sreg}, 0, s{sreg}"]

LW, LX, LH = 0, 65536, 131072
L1T, L1F = 200, 208
BIAS = 240
def g_prep(a):
    srd(a, 8, P['x'], SZ['x'])
    srd(a, 16, P['gw'], SZ['gw'])
    a(f"s_and_b32 s26, s{IDX}, 1            ; kv")
    a("s_cmp_eq_u32 s26, 1")
    a(f"s_cselect_b32 s44, s{P['wv']}, s{P['wk']}")
    a(f"s_cselect_b32 s45, s{P['wv']+1}, s{P['wk']+1}")
    a("s_and_b32 s45, s45, 0xffff")
    a(f"s_mov_b32 s46, 0x{SZ['wk']:x}")
    a("s_mov_b32 s47, 0x20000")
    a(f"s_lshl_b32 s27, s{XCD}, 8")
    a(f"s_lshl_b32 s28, s{IDX}, 4")
    a("s_add_u32 s35, s27, s28")
    a("s_lshl_b32 s28, s20, 1")
    a("s_add_u32 s36, s35, s28")
    a("s_lshl_b32 s37, s36, 11")
    a("v_lshlrev_b32 v4, 4, v1             ; lane*16")
    for k in range(4):
        a(f"buffer_load_dwordx4 {vr(8+4*k,4)}, v4, s[8:11], s37 offen offset:{k*1024}{NTX}")
    a("buffer_load_dwordx4 v[24:27], v4, s[16:19], 0 offen")
    a("buffer_load_dwordx4 v[28:31], v4, s[16:19], 0 offen offset:1024")
    a(f"s_lshr_b32 s56, s{IDX}, 1")
    a("s_lshl_b32 s56, s56, 3")
    a("s_add_u32 s56, s56, s20")
    a("s_lshl_b32 s56, s56, 10")
    a("v_lshlrev_b32 v93, 7, v1")
    a("s_and_b32 s27, s20, 3")
    a("s_lshr_b32 s27, s27, 1             ; wr")
    a("s_mul_i32 s29, s22, 14")
    a("s_lshl_b32 s30, s27, 3")
    a("s_add_u32 s30, s30, s29")
    a("s_add_u32 s31, s29, 6")
    a("s_add_u32 s31, s31, s27")
    a("s_lshl_b32 s57, s30, 5")
    a("s_lshl_b32 s58, s31, 5")
    a("v_lshlrev_b32 v153, 3, v3")
    a("s_lshl_b32 s39, s20, 13             ; w*8192")
    a("s_add_u32 s40, s39, 4096")
    a("s_and_b32 s34, s35, 0xffffffe0")
    a("s_lshl_b32 s38, s20, 8              ; w*256 bytes")
    XF, WF, AC = 96, 32, 64
    XV, GV = 32, 64
    XD = 128
    a("v_add_u32 v5, s34, v3")
    a("v_lshlrev_b32 v5, 11, v5")
    a("v_add_u32 v5, s38, v5")
    a("v_xor_b32 v6, v2, v3")
    for i in range(8):
        a(f"v_xor_b32 v7, {(4*i) & 15}, v6")
        a(f"v_lshl_add_u32 v{XD+i}, v7, 4, v5")
        a(f"v_add_u32 v{XD+i}, {i*4*2048 - (i%4)*1024}, v{XD+i}")
    a("v_and_b32 v5, 31, v1")
    a("v_lshrrev_b32 v6, 5, v1")
    a("v_xor_b32 v6, v6, v2")
    a("v_lshlrev_b32 v5, 8, v5")
    a("v_lshl_add_u32 v5, v6, 4, v5")
    a(f"s_add_u32 s31, s39, {LX}")
    a("v_add_u32 v5, s31, v5")
    for t in range(8): a(f"v_xor_b32 v{XD+8+t}, {t*32}, v5")
    srd(a, 48, P['w1'], SZ['w1'])
    a(f"s_lshl_b32 s28, s{IDX}, 3")
    a("s_add_u32 s28, s28, s20")
    a("s_lshl_b32 s28, s28, 1")
    a("v_add_u32 v5, s28, v3")
    a("s_movk_i32 s29, 7168")
    a("v_mul_lo_u32 v5, v5, s29")
    a("v_min_u32 v6, 13, v2")
    a("v_lshl_add_u32 v5, v6, 7, v5")
    a(f"s_lshr_b32 s29, s{XCD}, 1")
    a("s_mul_i32 s29, s29, 1792")
    a("v_add_u32 v92, s29, v5")
    a("s_and_b32 s28, s20, 1")
    a("s_lshl_b32 s28, s28, 7")
    a("s_lshr_b32 s29, s20, 2")
    a("s_lshl_b32 s29, s29, 5")
    a("s_or_b32 s28, s28, s29")
    a("v_xor_b32 v144, s28, v4")
    a("s_lshl_b32 s29, s20, 12")
    a(f"s_add_u32 s29, s29, {LH}")
    a("v_add_u32 v144, s29, v144")
    a("v_xor_b32 v145, 64, v144")
    a("v_lshrrev_b32 v5, 2, v2             ; r")
    a("v_and_b32 v6, 1, v3")
    a("v_lshrrev_b32 v7, 1, v3")
    a("v_lshl_add_u32 v146, v6, 3, v5")
    a("v_lshlrev_b32 v146, 11, v146")
    a("v_lshl_add_u32 v146, v5, 6, v146")
    a("v_xor_b32 v147, v6, v7")
    a("v_lshl_add_u32 v146, v147, 5, v146")
    a("v_and_b32 v147, 3, v1")
    a("v_lshl_add_u32 v146, v147, 3, v146")
    a(f"s_add_u32 s28, s38, {LH}")
    a("v_add_u32 v146, s28, v146")
    a("v_lshl_add_u32 v150, v7, 3, v5")
    a("v_lshlrev_b32 v150, 6, v150")
    a("v_lshl_add_u32 v150, v6, 5, v150")
    a("v_lshl_add_u32 v150, v147, 3, v150")
    a("v_add_u32 v150, s39, v150")
    for p in range(1, 4): a(f"v_xor_b32 v{146+p}, {p*64}, v146")
    a("v_lshlrev_b32 v151, 10, v7")
    a("v_lshl_add_u32 v151, v6, 8, v151")
    a("v_lshl_add_u32 v151, v2, 4, v151")
    a("s_lshl_b32 s41, s20, 19")
    a("s_lshr_b32 s29, s35, 5")
    a("s_lshl_b32 s29, s29, 13")
    a("s_add_u32 s41, s41, s29")
    a("s_and_b32 s29, s35, 31")
    a("s_lshl_b32 s29, s29, 5")
    a("s_add_u32 s41, s41, s29")
    a(f"s_add_u32 s41, s41, {WS_HT}")
    a("s_add_u32 s42, s41, 4096")
    a("s_lshl_b32 s43, s36, 2")
    a(f"s_add_u32 s43, s43, {WS_G}")
    a("v_lshlrev_b32 v152, 2, v1")
    mlp1_loader_setup(a)
    a("s_waitcnt vmcnt(0)")
    stamp(a, 1)
    srd(a, 16, P['b1'], SZ['b1'])
    a("s_mov_b64 exec, 0xff")
    a("buffer_load_dword v254, v93, s[44:47], s56 offen")
    a("s_mov_b32 exec_lo, -1")
    a(f"buffer_load_dword v254, v92, s[48:51], 0 offen{NTP}")
    a("s_mov_b64 exec, -1")
    for i in range(6):
        a(f"buffer_load_dwordx2 {vr(BIAS+2*i,2)}, v153, s[16:19], s57 offen offset:{i*32}")
    a(f"buffer_load_dwordx2 {vr(BIAS+12,2)}, v153, s[16:19], s58 offen")
    b = Asm()
    for i in range(16):
        b(f"v_lshlrev_b32 v{XV+2*i}, 16, v{8+i}")
        b(f"v_and_b32 v{XV+2*i+1}, 0xffff0000, v{8+i}")
    for i in range(8):
        b(f"v_lshlrev_b32 v{GV+2*i}, 16, v{24+i}")
        b(f"v_and_b32 v{GV+2*i+1}, 0xffff0000, v{24+i}")
    for r in range(2):
        X = XV + 16 * r
        b(f"v_pk_add_f32 {vr(80+2*r,2)}, {vr(X,2)}, {vr(X+2,2)}")
        b(f"v_pk_mul_f32 {vr(84+2*r,2)}, {vr(X,2)}, {vr(GV,2)}")
    for i in range(2, 16, 2):
        for r in range(2):
            X = XV + 16 * r
            if i >= 4: b(f"v_pk_add_f32 {vr(80+2*r,2)}, {vr(80+2*r,2)}, {vr(X+i,2)}")
            b(f"v_pk_fma_f32 {vr(84+2*r,2)}, {vr(X+i,2)}, {vr(GV+i,2)}, {vr(84+2*r,2)}")
    for q in (80, 82, 84, 86): b(f"v_add_f32 v{q}, v{q}, v{q+1}")
    wave_reduce(b, [80, 82, 84, 86])
    b("s_nop 0")
    for k, q in enumerate((80, 82, 84, 86)): b(f"v_readlane_b32 s{28+k}, v{q}, 63")
    b(f"v_mov_b32 v88, {fhex(-1.0/1024)}")
    b("s_nop 0")
    b("v_mul_f32 v80, s28, v88")
    b("v_mul_f32 v82, s29, v88")
    b("v_mov_b32 v81, v80")
    b("v_mov_b32 v83, v82")
    for i in range(0, 16, 2):
        for r in range(2):
            X = XV + 16 * r
            b(f"v_pk_add_f32 {vr(X+i,2)}, {vr(X+i,2)}, {vr(80+2*r,2)}")
    for r in range(2):
        X = XV + 16 * r
        b(f"v_pk_mul_f32 {vr(84+2*r,2)}, {vr(X,2)}, {vr(X,2)}")
    for i in range(2, 16, 2):
        for r in range(2):
            X = XV + 16 * r
            b(f"v_pk_fma_f32 {vr(84+2*r,2)}, {vr(X+i,2)}, {vr(X+i,2)}, {vr(84+2*r,2)}")
    b("v_add_f32 v84, v84, v85")
    b("v_add_f32 v86, v86, v87")
    wave_reduce(b, [84, 86])
    b("s_nop 0")
    b("v_readlane_b32 s28, v84, 63")
    b("v_readlane_b32 s29, v86, 63")
    b(f"v_mov_b32 v88, {fhex(1.0/1024)}")
    b(f"v_mov_b32 v89, {fhex(1e-5)}")
    b("v_fma_f32 v80, s28, v88, v89")
    b("v_fma_f32 v82, s29, v88, v89")
    b("v_rsq_f32 v80, v80")
    b("v_rsq_f32 v82, v82")
    b("v_mov_b32 v90, s30")
    b("v_mov_b32 v91, s31")
    b("v_cmp_eq_u32 vcc, 1, v1")
    b("v_mov_b32 v81, v80")
    b("v_mov_b32 v83, v82")
    b("v_cndmask_b32 v90, v90, v91, vcc")
    b(f"v_mul_f32 v90, {fhex(-LOG2E)}, v90")
    b("v_exp_f32 v90, v90")
    for i in range(0, 16, 2):
        for r in range(2):
            X = XV + 16 * r
            b(f"v_pk_mul_f32 {vr(X+i,2)}, {vr(X+i,2)}, {vr(80+2*r,2)}")
    b("v_add_f32 v90, 1.0, v90")
    b("v_rcp_f32 v90, v90")
    for i in range(16):
        b(f"v_cvt_pk_bf16_f32 v{8+i}, v{XV+2*i}, v{XV+2*i+1}")
    dma = []
    for h in range(2):
        dma.append(f"s_add_u32 m0, s{39+h}, {LW}")
        for i in range(4): dma.append(f"buffer_load_dwordx4 v4, s[44:47], s{39+h} offen offset:{i*1024} lds")
    for h in range(2):
        dma.append(f"s_add_u32 m0, s{39+h}, {LX}")
        for i in range(4): dma.append(f"buffer_load_dwordx4 v{XD+4*h+i}, s[8:11], 0 offen offset:{i*1024} lds")
    for l in b.lines: a(l)
    a("ds_write_b128 v144, v[8:11]")
    a("ds_write_b128 v144, v[12:15] offset:1024")
    a("ds_write_b128 v145, v[16:19] offset:2048")
    a("ds_write_b128 v145, v[20:23] offset:3072")
    a("s_mov_b64 exec, 3")
    a(f"buffer_store_dword v90, v152, s[12:15], s43 offen{SC}")
    a("s_mov_b64 exec, -1")
    a("s_waitcnt lgkmcnt(0)")
    tag_finish(a)
    stamp(a, 2)
    a("s_barrier")
    stamp(a, 20)
    for p in range(4):
        a(f"ds_read_b64_tr_b16 {vr(8+4*p,2)}, v{146+p}")
        a(f"ds_read_b64_tr_b16 {vr(10+4*p,2)}, v{146+p} offset:{4*2048}")
    for p in range(4):
        a(f"s_waitcnt lgkmcnt({6-2*p})")
        a(f"buffer_store_dwordx4 {vr(8+4*p,4)}, v151, s[12:15], s{41 + p//2} offen offset:{(p%2)*2048}{SC}")
    a(f"s_lshl_b32 s33, s{XCD}, 4")
    a(f"s_add_u32 s33, s33, s{IDX}")
    a("s_lshl_b32 s33, s33, 4")
    a("v_lshlrev_b32 v6, 11, v1")
    def dmas():
        for x in dma:
            a(x)
            if "m0" in x: a("s_nop 0")
    a("s_barrier")
    stamp(a, 21)
    a("s_cmp_ge_u32 s20, 4")
    a("s_cbranch_scc1 GP_HI")
    dmas()
    a("s_waitcnt vmcnt(16)")
    stamp(a, 3)
    a("s_barrier")
    stamp(a, 22)
    a("s_branch GP_J2")
    a.label("GP_HI")
    a("s_waitcnt vmcnt(0)")
    stamp(a, 3)
    a("s_barrier")
    stamp(a, 22)
    a("s_cmp_eq_u32 s20, 4")
    a("s_cbranch_scc0 GP_NF")
    a(f"s_add_u32 s28, s33, {FL_F1}")
    flag_store(a, 6, 7, "s28", "0xff")
    a.label("GP_NF")
    dmas()
    a(f"buffer_load_dword v254, v{L1F+1}, s[48:51], 0 offen{NTP}")
    a("s_waitcnt vmcnt(1)")
    a("s_branch GP_J3")
    a.label("GP_J2")
    a("s_waitcnt vmcnt(0)")
    a.label("GP_J3")
    stamp(a, 24)
    for t in range(8):
        a(f"ds_read_b128 {vr(XF+4*t,4)}, v{XD+8+t}")
        a(f"ds_read_b64_tr_b16 {vr(WF+4*t,2)}, v150 offset:{t*1024}")
        a(f"ds_read_b64_tr_b16 {vr(WF+4*t+2,2)}, v150 offset:{t*1024+256}")
    a("s_cmp_eq_u32 s26, 1")
    a("s_waitcnt lgkmcnt(0)")
    a("s_cbranch_scc1 GP_V")
    for t in range(8):
        a(f"{M32} {vr(AC,16)}, {vr(WF+4*t,4)}, {vr(XF+4*t,4)}, {'0' if t == 0 else vr(AC,16)}")
    a("s_branch GP_J")
    a.label("GP_V")
    for t in range(8):
        a(f"{M32} {vr(AC,16)}, {vr(XF+4*t,4)}, {vr(WF+4*t,4)}, {'0' if t == 0 else vr(AC,16)}")
    a.label("GP_J")
    a(f"s_add_u32 s31, s39, {LX}")
    a("v_add_u32 v5, s31, v4")
    a("s_nop 10")
    for q in range(4): a(f"ds_write_b128 v5, {vr(AC+4*q,4)} offset:{q*1024}")
    a("s_waitcnt lgkmcnt(0)")
    stamp(a, 25)
    a("s_barrier")
    stamp(a, 26)
    a("s_cmp_eq_u32 s20, 0")
    a("s_cbranch_scc0 GP_DONE")
    PR = 32
    a(f"v_add_u32 v5, {LX}, v4")
    for w in range(8):
        for q in range(4):
            a(f"ds_read_b128 {vr(PR + w*16 + q*4, 4)}, v5 offset:{w*8192 + q*1024}")
    a("s_waitcnt lgkmcnt(0)")
    a("s_barrier")
    for st in (1, 2, 4):
        for w in range(0, 8, 2 * st):
            for j in range(0, 16, 2):
                a(f"v_pk_add_f32 {vr(PR+w*16+j,2)}, {vr(PR+w*16+j,2)}, {vr(PR+(w+st)*16+j,2)}")
    for j in range(8): a(f"v_cvt_pk_bf16_f32 v{16+j}, v{PR+2*j}, v{PR+2*j+1}")
    a("s_lshr_b32 s28, s34, 5              ; kt")
    a("s_lshl_b32 s29, s28, 12")
    a("s_lshl_b32 s30, s26, 11")
    a("s_add_u32 s29, s29, s30")
    a(f"s_add_u32 s29, s29, {WS_KV}")
    a(f"buffer_store_dwordx4 v[16:19], v4, s[12:15], s29 offen{SC}")
    a(f"buffer_store_dwordx4 v[20:23], v4, s[12:15], s29 offen offset:1024{SC}")
    a("s_cmp_eq_u32 s26, 1")
    a("s_cbranch_scc1 GP_DONE")
    for j in range(8):
        a(f"v_lshlrev_b32 v{PR+2*j}, 16, v{16+j}")
        a(f"v_and_b32 v{PR+2*j+1}, 0xffff0000, v{16+j}")
    a(f"v_mul_f32 v24, v{PR}, v{PR}")
    for j in range(1, 16): a(f"v_fmac_f32 v24, v{PR+j}, v{PR+j}")
    a("v_mov_b32 v25, v24")
    a("s_nop 1")
    a("v_permlane32_swap_b32 v24, v25")
    a("v_add_f32 v24, v24, v25")
    wave_reduce(a, [24], op="v_max_f32")
    a("s_lshl_b32 s28, s28, 2")
    a(f"s_add_u32 s28, s28, {WS_KN}")
    a("v_mov_b32 v25, 0")
    a("s_mov_b32 exec_lo, 0")
    a("s_mov_b32 exec_hi, 0x80000000")
    a(f"buffer_store_dword v24, v25, s[12:15], s28 offen{SC}")
    a("s_mov_b64 exec, -1")
    a.label("GP_DONE")

M1_SLOT, M1_R, M1_NS, M1_ACC = 49152, 3, 32, 128
M1_SET = [(16, 44), (60, 88)]
def m1_acc(i, j): return M1_ACC + (i * 4 + j) * 4

def mlp1_loader_setup(a):
    a("s_and_b32 s52, s20, 3              ; lw")
    a("v_lshrrev_b32 v5, 3, v1            ; l/8")
    a("v_and_b32 v6, 7, v1                ; l%8")
    a("v_and_b32 v7, 2, v5")
    a("v_xor_b32 v6, v6, v7")
    a("s_movk_i32 s28, 7168")
    a("v_mul_lo_u32 v5, v5, s28")
    a("s_mul_i32 s28, s22, 448")
    a("s_and_b32 s29, s22, 1")
    a("s_lshl_b32 s29, s29, 6")
    a("s_sub_u32 s28, s28, s29")
    a("s_lshl_b32 s29, s52, 7")
    a("s_add_u32 s28, s28, s29")
    a("v_add_u32 v5, s28, v5")
    a("v_lshl_add_u32 v7, v6, 4, v5       ; even i")
    a("v_xor_b32 v6, 4, v6")
    a("v_lshl_add_u32 v6, v6, 4, v5       ; odd i")
    for i in range(8):
        a(f"v_add_u32 v{L1T+i}, {i*8*7168 - (i%4)*1024}, v{7 if i%2==0 else 6}")
    a("s_lshl_b32 s28, s21, 19")
    a("s_lshl_b32 s29, s52, 12")
    a("s_add_u32 s28, s28, s29")
    a(f"s_add_u32 s28, s28, {WS_HT}")
    a(f"v_lshl_add_u32 v{L1F}, v1, 4, s28")
    a(f"s_lshl_b32 s28, s{IDX}, 2")
    a("s_add_u32 s28, s28, s52")
    a("s_lshl_b32 s28, s28, 2")
    a("s_add_u32 s28, s28, 256")
    a("v_add_u32 v5, s28, v3")
    a("s_movk_i32 s28, 7168")
    a("v_mul_lo_u32 v5, v5, s28")
    a("v_min_u32 v6, 13, v2")
    a("v_lshl_add_u32 v5, v6, 7, v5")
    a(f"s_lshr_b32 s28, s{XCD}, 1")
    a("s_mul_i32 s28, s28, 1792")
    a(f"v_add_u32 v{L1F+1}, s28, v5")
    a("s_lshl_b32 s54, s52, 13")
    a("s_add_u32 s55, s29, 32768")

def mlp1_loader(a):
    n = 12
    a("s_mov_b32 s24, 0")
    a("s_mov_b32 s25, 0")
    a("s_mov_b32 s26, 0")
    a("s_mov_b32 m0, s54")
    a("s_add_u32 s56, s54, 4096")
    def issueT():
        for i in range(4): a(f"buffer_load_dwordx4 v{L1T+i}, s[48:51], s25 offen offset:{i*1024}{NTW} lds")
        a("s_add_u32 m0, s24, s56")
        a("s_nop 0")
        for i in range(4, 8): a(f"buffer_load_dwordx4 v{L1T+i}, s[48:51], s25 offen offset:{(i%4)*1024}{NTW} lds")
        a("s_add_u32 m0, s24, s55")
        a(f"s_add_u32 s25, s25, {64*7168}")
    def issueF():
        adv = slot_advance(24, M1_SLOT, M1_R)
        for i in range(4):
            a(f"buffer_load_dwordx4 v{L1F}, s[12:15], s26 offen offset:{i*1024}{SC} lds")
            if i < 3: a(adv[i])
        a("s_add_u32 s26, s26, 16384")
        a("s_add_u32 m0, s24, s54")
    a(f"s_lshl_b32 s28, s{XCD}, 11")
    a(f"s_add_u32 s28, s28, {FL_F1}")
    issueT()
    a("s_barrier")
    poll(a, [(4, "s28", 0), (4, "s28", 1024)], 17, "M1P")
    stamp(a, 4)
    issueF()
    a("s_nop 0")
    issueT(); issueF()
    a(f"s_waitcnt vmcnt({n})")
    a("s_barrier")
    issueT(); issueF()
    a(f"s_waitcnt vmcnt({n})")
    a("s_barrier")
    issueT(); issueF()
    UN = 4
    a(f"s_mov_b32 s23, {(M1_NS - M1_R - 1) // UN}")
    a(".p2align 6")
    a.label("M1_LDL")
    for u in range(UN):
        a(f"s_waitcnt vmcnt({(M1_R-2)*n})")
        a("s_barrier")
        issueT(); issueF()
    if PROF["on"]:
        a("s_memtime s[94:95]")
        a("s_memrealtime s[96:97]")
        a("s_lshl_b32 s60, s23, 1")
        a("s_add_u32 s60, s60, 46")
        a("s_add_u32 s61, s60, 1")
        a("s_waitcnt lgkmcnt(0)")
        a("v_writelane_b32 v255, s94, s60" if False else "s_mov_b32 s62, m0")
        a("s_mov_b32 m0, s60")
        a("v_writelane_b32 v255, s94, m0")
        a("s_mov_b32 m0, s61")
        a("v_writelane_b32 v255, s96, m0")
        a("s_mov_b32 m0, s62")
    a("s_sub_u32 s23, s23, 1")
    a("s_cmp_lg_u32 s23, 0")
    a("s_cbranch_scc1 M1_LDL")
    for i in range(M1_NS - M1_R, M1_NS - 1):
        left = (M1_NS - 1) - (i + 1)
        a(f"s_waitcnt vmcnt({left*n})")
        a("s_barrier")
    a("s_barrier")

def mlp1_compute(a):
    a("s_cmp_eq_u32 s20, 0")
    a("s_cbranch_scc1 M1_NP3")
    a("s_barrier")
    a.label("M1_NP3")
    a("s_lshr_b32 s27, s20, 1             ; wr")
    a("s_and_b32 s28, s20, 1              ; wc")
    a("s_mul_i32 s29, s22, 14")
    a("s_lshl_b32 s30, s27, 3")
    a("s_add_u32 s30, s30, s29")
    a("s_add_u32 s31, s29, 6")
    a("s_add_u32 s31, s31, s27")
    a("v_lshrrev_b32 v5, 2, v2            ; r")
    a("v_lshl_add_u32 v6, v3, 3, v5       ; 8g+r")
    a("v_lshlrev_b32 v6, 7, v6")
    a("v_and_b32 v7, 3, v1")
    a("v_lshl_add_u32 v6, v7, 3, v6       ; + c*8")
    a("v_lshrrev_b32 v5, 1, v5")
    a("v_and_b32 v7, 1, v3")
    a("v_lshl_add_u32 v5, v7, 1, v5       ; f")
    a("v_lshl_add_u32 v6, v5, 5, v6")
    a("s_and_b32 s34, s22, 1")
    a("s_lshl_b32 s34, s34, 1")
    a("s_lshl_b32 s35, s27, 3")
    a("s_add_u32 s35, s35, s34            ; jj0")
    a("s_add_u32 s36, s34, 6")
    a("s_add_u32 s36, s36, s27            ; jj6")
    for i in range(5):
        if i < 4: a(f"s_add_u32 s37, s35, {i}")
        else: a("s_mov_b32 s37, s36")
        a("s_and_b32 s38, s37, 3")
        a("s_lshl_b32 s38, s38, 5")
        a("s_lshr_b32 s37, s37, 2")
        a("s_lshl_b32 s37, s37, 13")
        a(f"v_xor_b32 v{10+i}, s38, v6")
        a(f"v_add_u32 v{10+i}, s37, v{10+i}")
    a("s_lshl_b32 s37, s28, 12")
    a("s_add_u32 s37, s37, 32768")
    a("v_lshl_add_u32 v15, v1, 4, s37")
    for i in range(7):
        b = m1_acc(i, 0)
        a(f"v_lshlrev_b32 v{b}, 16, v{BIAS+2*i}")
        a(f"v_and_b32 v{b+1}, 0xffff0000, v{BIAS+2*i}")
        a(f"v_lshlrev_b32 v{b+2}, 16, v{BIAS+1+2*i}")
        a(f"v_and_b32 v{b+3}, 0xffff0000, v{BIAS+1+2*i}")
        for j in range(1, 4):
            for r in range(4): a(f"v_mov_b32 v{m1_acc(i,j)+r}, v{b+r}")
    for i in range(6): a(f"v_mov_b32 v{4+i}, v{10+i}")
    a("s_mov_b32 s24, 0")
    def reads(st, t):
        A, B = M1_SET[st]
        o = []
        for j in range(4):
            o.append(f"ds_read_b128 {vr(B+4*j,4)}, v9 offset:{t*8192 + j*1024}")
        for i in range(7):
            reg = 4 + (i % 4) if i < 6 else 8
            off = (8192 if i in (4, 5) else 0) + t * 4096
            o.append(f"ds_read_b64_tr_b16 {vr(A+4*i,2)}, v{reg} offset:{off}")
            o.append(f"ds_read_b64_tr_b16 {vr(A+4*i+2,2)}, v{reg} offset:{off+512}")
        return o
    def mfmas(st):
        A, B = M1_SET[st]
        return [f"{M16} {vr(m1_acc(i,j),4)}, {vr(A+4*i,4)}, {vr(B+4*j,4)}, {vr(m1_acc(i,j),4)}"
                for i in range(7) for j in range(4)]
    upd = slot_advance(24, M1_SLOT, M1_R) + [f"v_add_u32 v{4+i}, s24, v{10+i}" for i in range(6)]
    def stage(last=False):
        for x in interleave(mfmas(0), reads(1, 1) + ([] if last else upd), 0, 27 if not last else 20): a(x)
        a("s_waitcnt lgkmcnt(0)")
        a("s_barrier")
        seq = interleave(mfmas(1), reads(0, 0), 0, 20) if not last else mfmas(1)
        for x in seq: a(x)
        if not last: a("s_waitcnt lgkmcnt(0)")
    a("s_cmp_eq_u32 s20, 0")
    a("s_cbranch_scc0 M1_NKF")
    a("v_lshlrev_b32 v16, 11, v1")
    a(f"s_add_u32 s33, s33, {FL_F1B}")
    a("s_waitcnt vmcnt(0)")
    flag_store(a, 16, 17, "s33", "0xff")
    a.label("M1_NKF")
    stamp(a, 4)
    a("s_barrier")
    stamp(a, 5)
    for x in reads(0, 0): a(x)
    a(f"s_mov_b32 s23, {(M1_NS-2)//2}")
    a("s_waitcnt lgkmcnt(0)")
    a(".p2align 6")
    a.label("M1_CL")
    stage(); stage()
    a("s_sub_u32 s23, s23, 1")
    a("s_cmp_lg_u32 s23, 0")
    a("s_cbranch_scc1 M1_CL")
    stage(); stage(last=True)

def mlp1_epilogue(a):
    c1 = -2.0 * 0.7978845608028654 * LOG2E
    c2 = c1 * 0.044715
    a(f"v_mov_b32 v4, {fhex(c1)}")
    a(f"v_mov_b32 v5, {fhex(c1)}")
    a(f"v_mov_b32 v6, {fhex(c2)}")
    a(f"v_mov_b32 v7, {fhex(c2)}")
    a(f"s_mul_i32 s32, s21, {112*8192}")
    a("s_lshl_b32 s33, s28, 12")
    a("s_add_u32 s32, s32, s33")
    a(f"s_add_u32 s32, s32, {WS_U}")
    a("s_lshr_b32 s33, s30, 1")
    a("s_lshl_b32 s33, s33, 13")
    a("s_add_u32 s33, s33, s32")
    a("s_lshr_b32 s34, s31, 1")
    a("s_lshl_b32 s34, s34, 13")
    a("s_add_u32 s34, s34, s32")
    a("s_lshl_b32 s35, s27, 3")
    a("s_add_u32 s34, s34, s35")
    a("v_lshlrev_b32 v8, 4, v1")
    a("s_lshl_b32 s35, s22, 2")
    a("s_add_u32 s35, s35, s20")
    a("s_lshl_b32 s35, s35, 7")
    a("s_lshl_b32 s36, s21, 13")
    a("s_add_u32 s35, s35, s36")
    a(f"s_add_u32 s35, s35, {FL_F2}")
    a("s_add_u32 s36, s35, 65536")
    a("v_mov_b32 v9, 0")
    T = 16
    def gelu_block(accs, tb, ob):
        n = len(accs)
        pr = [(accs[q] + 2 * h, tb + 4 * q + 2 * h) for q in range(n) for h in range(2)]
        for u, t in pr: a(f"v_pk_mul_f32 {vr(t,2)}, {vr(u,2)}, {vr(u,2)}")
        for u, t in pr: a(f"v_pk_fma_f32 {vr(t,2)}, {vr(t,2)}, v[6:7], v[4:5]")
        for u, t in pr: a(f"v_pk_mul_f32 {vr(t,2)}, {vr(t,2)}, {vr(u,2)}")
        for u, t in pr:
            a(f"v_exp_f32 v{t}, v{t}"); a(f"v_exp_f32 v{t+1}, v{t+1}")
        for u, t in pr: a(f"v_pk_add_f32 {vr(t,2)}, {vr(t,2)}, 1.0 op_sel_hi:[1,0]")
        for u, t in pr:
            a(f"v_rcp_f32 v{t}, v{t}"); a(f"v_rcp_f32 v{t+1}, v{t+1}")
        for u, t in pr: a(f"v_pk_mul_f32 {vr(t,2)}, {vr(t,2)}, {vr(u,2)}")
        for k, (u, t) in enumerate(pr): a(f"v_cvt_pk_bf16_f32 v{ob+k}, v{t}, v{t+1}")
    blk = 0
    for p in range(3):
        for j in range(0, 4, 2):
            ob = 48 + (blk % 4) * 8
            gelu_block([m1_acc(2*p, j), m1_acc(2*p+1, j), m1_acc(2*p, j+1), m1_acc(2*p+1, j+1)], T, ob)
            if blk == env("F2_AT", 3):
                a(f"s_waitcnt vmcnt({2*(blk-2)})")
                flag_store(a, 9, 10, "s35", "1")
            a(f"buffer_store_dwordx4 {vr(ob,4)}, v8, s[12:15], s33 offen offset:{j*1024}{SC}")
            a(f"buffer_store_dwordx4 {vr(ob+4,4)}, v8, s[12:15], s33 offen offset:{(j+1)*1024}{SC}")
            blk += 1
        a("s_add_u32 s33, s33, 8192")
    ob = 48 + (blk % 4) * 8
    gelu_block([m1_acc(6, j) for j in range(4)], T, ob)
    for j in range(4):
        a(f"buffer_store_dwordx2 {vr(ob+2*j,2)}, v8, s[12:15], s34 offen offset:{j*1024}{SC}")

M2_SLOT, M2_R, M2_ACC = 32768, env("M2_R", 4), 128
M2_SET = [(16, 32), (48, 64)]
def m2_acc(i, j): return M2_ACC + (i * 4 + j) * 4

def g2_loader(a, part):
    pfx = f"L{part}"
    NS = 56 if part == 1 else 16
    sh = 12 if part == 1 else 11
    srd(a, 8, P['w2'] if part == 1 else P['wo'], SZ['w2'] if part == 1 else SZ['wo'])
    a("s_sub_u32 s27, s20, 4              ; lw")
    a("s_lshr_b32 s28, s27, 1")
    a("s_and_b32 s29, s27, 1              ; cb")
    a("v_lshrrev_b32 v4, 3, v1            ; l/8")
    a("v_and_b32 v5, 7, v1")
    a("v_and_b32 v6, 6, v4")
    a("v_xor_b32 v5, v5, v6")
    a("s_lshl_b32 s30, s29, 7")
    a(f"s_lshl_b32 s31, s{22 if part == 1 else 21}, 8")
    a("s_add_u32 s30, s30, s31")
    a("v_lshl_add_u32 v5, v5, 4, s30")
    a(f"v_lshl_add_u32 v6, v4, {sh}, v5")
    for i in range(4): a(f"v_add_u32 v{8+i}, {i*((8 << sh)-1024)}, v6")
    a("s_lshl_b32 s32, s29, 12            ; (lw&1)*4096")
    if part == 1: a(f"s_mul_i32 s31, s21, {112*8192}")
    else: a("s_lshl_b32 s31, s22, 18")
    a("s_add_u32 s31, s31, s32")
    a(f"s_add_u32 s31, s31, {WS_U if part == 1 else WS_O}")
    a("v_lshl_add_u32 v7, v1, 4, s31")
    a("s_lshl_b32 s30, s29, 13")
    a("s_lshl_b32 s31, s28, 12")
    a("s_add_u32 s30, s30, s31")
    a("s_lshl_b32 s31, s27, 12")
    a("s_add_u32 s31, s31, 16384")
    a("s_mov_b32 s24, 0                   ; slot")
    a("s_mov_b32 s33, 0")
    a("v_lshlrev_b32 v16, 4, v1")
    if part == 1:
        a("s_lshl_b32 s34, s21, 13")
        a(f"s_add_u32 s34, s34, {FL_F2}")
        a("v_lshlrev_b32 v16, 7, v1")
        a("s_mov_b32 s44, 0x11111111")
        a("s_lshl_b32 s44, s44, s27")
        a("s_mov_b32 s45, s44")
        a("s_mov_b32 s46, 0x55555555")
        a("s_lshl_b32 s46, s46, s29")
        a(f"s_sleep {env('L1_SLEEP', 24)}")
        a("s_lshl_b32 s35, s28, 2             ; 4*half")
        a("s_and_b32 s36, s22, 12")
        a("s_add_u32 s36, s36, 4")
        a("s_mov_b64 s[40:41], 0")
    cnt = [0]
    tail = []
    def nxt():
        o = []
        if part == 1:
            o += ["s_lshl_b32 s47, s33, 1", "s_add_u32 s47, s47, s28", "s_lshr_b32 s48, s33, 4", "s_add_u32 s48, s48, s35",
                  "s_cmp_ge_u32 s33, 48", "s_cselect_b32 s47, s47, s33", "s_cselect_b32 s48, 3, s48",
                  "s_cselect_b32 s37, s29, s27", "s_cselect_b32 s38, 5, 1",
                  "s_add_u32 s47, s47, s36", "s_and_b32 s47, s47, 15", "s_lshl_b32 s39, s47, 2", "s_add_u32 s37, s37, s39",
                  "s_mov_b32 s39, 0", "s_lshl_b64 s[38:39], s[38:39], s37", "s_mul_i32 s47, s47, 7", "s_add_u32 s48, s48, s47",
                  "s_cmp_eq_u32 s33, 16", "s_cselect_b32 s34, s49, s34", "s_cselect_b64 s[40:41], 0, s[40:41]",
                  "s_cselect_b32 s44, s46, s44", "s_cselect_b32 s45, s46, s45"]
        else:
            o += ["s_lshl_b32 s48, s33, 1", "s_add_u32 s48, s48, s28"]
        return o
    def gate():
        if part != 1: return
        cnt[0] += 1
        L = f"L1G{cnt[0]}"
        a("s_andn2_b64 s[42:43], s[38:39], s[40:41]")
        a(f"s_cbranch_scc1 {L}_P")
        a.label(f"{L}_D")
        tail.append(L)
    def commit():
        a(f"s_lshl_b32 s25, s48, {sh+5}")
        a("s_lshl_b32 s26, s48, 13")
        a("s_add_u32 m0, s24, s30")
    def issue(more=True):
        sal = (["s_add_u32 s33, s33, 1"] + nxt()) if more else []
        k = 0
        per = (len(sal) + 6) // 7
        for i in range(4):
            a(f"buffer_load_dwordx4 v{8+i}, s[8:11], s25 offen offset:{i*1024}{NTW if part == 1 else NTQ} lds")
            if i == 3: a("s_mov_b32 m0, s50")
            for x in sal[k:k+per]: a(x)
            k += per
            if i == 3 and not sal[k-per:k]: a("s_nop 0")
        for i in range(4):
            a(f"buffer_load_dwordx4 v7, s[12:15], s26 offen offset:{i*1024}{SC} lds")
            if i < 3:
                for x in sal[k:k+per]: a(x)
                k += per
        assert k >= len(sal)
        if more:
            for x in slot_advance(24, M2_SLOT, M2_R): a(x)
            a("s_add_u32 s50, s24, s31")
            commit()
            gate()
    n = 8; R = M2_R
    if part == 2:
        a("v_and_b32 v16, 7, v1")
        a("v_lshlrev_b32 v16, 6, v16")
        a("s_lshl_b32 s34, s22, 9")
        a(f"s_add_u32 s34, s34, {FL_F3}")
        poll(a, [(16, "s34", 0)], 17, "L2P")
    else:
        a("s_add_u32 s49, s34, 65536")
    for x in nxt(): a(x)
    a("s_mov_b32 s50, s31")
    commit()
    gate()
    a("s_nop 0")
    stamp(a, 8)
    issue()
    a("s_nop 0")
    issue()
    a(f"s_waitcnt vmcnt({n})")
    a("s_barrier")
    for _ in range(R - 2):
        issue()
        a("s_nop 0")
    UN = 4 if part == 1 else 1
    left = NS - R
    pre = (left - 1) % UN
    for _ in range(pre):
        a(f"s_waitcnt vmcnt({(R-2)*n})")
        a("s_barrier")
        issue()
    a(f"s_mov_b32 s23, {(left - 1 - pre) // UN}")
    a(".p2align 6")
    a.label(f"{pfx}_LOOP")
    for u in range(UN):
        a(f"s_waitcnt vmcnt({(R-2)*n})")
        a("s_barrier")
        issue()
    if PROF["on"] and part == 1:
        a("s_memtime s[94:95]")
        a("s_memrealtime s[96:97]")
        a("s_lshl_b32 s60, s23, 1")
        a("s_add_u32 s60, s60, 22")
        a("s_add_u32 s61, s60, 1")
        a("s_waitcnt lgkmcnt(0)")
        a("s_mov_b32 s62, m0")
        a("s_mov_b32 m0, s60")
        a("v_writelane_b32 v255, s94, m0")
        a("s_mov_b32 m0, s61")
        a("v_writelane_b32 v255, s96, m0")
        a("s_mov_b32 m0, s62")
    a("s_sub_u32 s23, s23, 1")
    a("s_cmp_lg_u32 s23, 0")
    a(f"s_cbranch_scc1 {pfx}_LOOP")
    a(f"s_waitcnt vmcnt({(R-2)*n})")
    a("s_barrier")
    issue(more=False)
    for i in range(NS - R, NS - 1):
        lf = (NS - 1) - (i + 1)
        a(f"s_waitcnt vmcnt({lf*n})")
        a("s_barrier")
    if tail:
        a(f"s_branch {pfx}_END")
        for L in tail:
            a.label(f"{L}_P")
            a("s_mov_b32 s99, 0x40000")
            a.label(f"{L}_C")
            a("s_andn2_b64 exec, s[44:45], s[40:41]")
            a("buffer_load_dword v17, v16, s[12:15], s34 offen sc1")
            a("s_waitcnt vmcnt(0)")
            a(f"v_cmp_eq_u32 vcc, s{TAG}, v17")
            a("s_mov_b64 exec, -1")
            a("s_or_b64 s[40:41], s[40:41], vcc")
            a("s_andn2_b64 s[42:43], s[38:39], s[40:41]")
            a(f"s_cbranch_scc0 {L}_D")
            a("s_sleep 4")
            a("s_sub_u32 s99, s99, 1")
            a("s_cmp_lg_u32 s99, 0")
            a(f"s_cbranch_scc1 {L}_C")
            a(f"s_branch {L}_D")
        a.label(f"{pfx}_END")

def g2_compute(a, part, pre_barrier=None, after_first=None):
    pfx = f"C{part}"
    NS = 56 if part == 1 else 16
    a("s_lshr_b32 s27, s20, 1")
    a("s_and_b32 s28, s20, 1")
    a("v_lshrrev_b32 v5, 2, v1            ; 4g + r = l/4")
    a("v_lshlrev_b32 v6, 7, v5")
    a("v_and_b32 v7, 3, v1")
    a("v_lshl_add_u32 v6, v7, 3, v6")
    a("v_lshrrev_b32 v5, 1, v5")
    a("v_and_b32 v5, 3, v5")
    a("v_lshl_add_u32 v6, v5, 5, v6")
    tw, fw = (28, 27) if part == 1 else (27, 28)
    a(f"s_lshl_b32 s30, s{tw}, 13")
    for j in range(4):
        a(f"v_xor_b32 v7, {j*32}, v6")
        a(f"v_add_u32 v{10+j}, s30, v7")
    a(f"s_lshl_b32 s30, s{fw}, 12")
    a("s_add_u32 s30, s30, 16384")
    a("v_lshl_add_u32 v14, v1, 4, s30")
    for i in range(5): a(f"v_mov_b32 v{4+i}, v{10+i}")
    a("s_mov_b32 s24, 0")
    def reads(st, t):
        Fb, Tb = M2_SET[st]
        o = []
        for j in range(4):
            o.append(f"ds_read_b128 {vr(Fb+4*j,4)}, v8 offset:{t*8192 + j*1024}")
            o.append(f"ds_read_b64_tr_b16 {vr(Tb+4*j,2)}, v{4+j} offset:{t*4096}")
            o.append(f"ds_read_b64_tr_b16 {vr(Tb+4*j+2,2)}, v{4+j} offset:{t*4096+2048}")
        return o
    def mfmas(st, first=False):
        Fb, Tb = M2_SET[st]
        A, B = (Fb, Tb) if part == 1 else (Tb, Fb)
        return [f"{M16} {vr(m2_acc(i,j),4)}, {vr(A+4*i,4)}, {vr(B+4*j,4)}, {'0' if first else vr(m2_acc(i,j),4)}"
                for i in range(4) for j in range(4)]
    upd = slot_advance(24, M2_SLOT, M2_R) + [f"v_add_u32 v{4+i}, s24, v{10+i}" for i in range(5)]
    def stage(last=False, first=False):
        seq = interleave(mfmas(0, first), reads(1, 1), 0, 10)
        if not last:
            out = []; k = 0; cnt = 0
            for x in seq:
                out.append(x)
                if x.startswith("v_mfma"):
                    cnt += 1
                    if cnt > 10:
                        for _ in range(2):
                            if k < len(upd): out.append(upd[k]); k += 1
            assert k == len(upd)
            seq = out
        for x in seq: a(x)
        a("s_waitcnt lgkmcnt(0)")
        if not last:
            a("s_barrier")
            seq = interleave(mfmas(1), reads(0, 0), 0, 10)
        else:
            seq = mfmas(1)
        for x in seq: a(x)
        if not last: a("s_waitcnt lgkmcnt(0)")
    if pre_barrier: pre_barrier()
    stamp(a, 8)
    a("s_barrier")
    stamp(a, 9)
    for x in reads(0, 0): a(x)
    a("s_waitcnt lgkmcnt(0)")
    stage(first=True)
    nx = 0
    if after_first:
        nx = env("L1_DELAY", 2)
        for _ in range(nx): stage()
        after_first()
    a(f"s_mov_b32 s23, {(NS-2-nx)//2}")
    a(".p2align 6")
    a.label(f"{pfx}_LOOP")
    stage(); stage()
    a("s_sub_u32 s23, s23, 1")
    a("s_cmp_lg_u32 s23, 0")
    a(f"s_cbranch_scc1 {pfx}_LOOP")
    stage(last=True)

def y_addr(a):
    a("s_lshl_b32 s37, s22, 3")
    a("s_add_u32 s37, s37, s21")
    a("s_lshl_b32 s37, s37, 2")
    a("s_add_u32 s37, s37, s20")
    a("s_lshl_b32 s38, s37, 6")
    a(f"s_add_u32 s38, s38, {FL_F4}")
    a("s_lshl_b32 s37, s37, 14")
    a(f"s_add_u32 s37, s37, {WS_Y}")

def g_role(a):
    a(f"s_and_b32 s21, s{XCD}, 1")
    a("s_lshl_b32 s21, s21, 2")
    a(f"s_and_b32 s29, s{IDX}, 3")
    a("s_add_u32 s21, s21, s29")
    a(f"s_lshr_b32 s22, s{XCD}, 1")
    a("s_lshl_b32 s22, s22, 2")
    a(f"s_lshr_b32 s29, s{IDX}, 2")
    a("s_add_u32 s22, s22, s29")
    g_prep(a)
    a("s_cmp_ge_u32 s20, 4")
    a("s_cbranch_scc1 G_LOADER")
    mlp1_compute(a)
    stamp(a, 6)
    mlp1_epilogue(a)
    stamp(a, 7)
    def pre():
        srd(a, 16, P['b2'], SZ['b2'])
        a("s_lshl_b32 s29, s22, 7")
        a("s_lshl_b32 s30, s28, 6")
        a("s_add_u32 s29, s29, s30")
        a("v_add_u32 v92, s29, v2")
        a("v_lshlrev_b32 v93, 1, v92")
        a("v_lshlrev_b32 v92, 2, v92")
        a(f"s_mov_b32 s30, {WS_G}")
        for j in range(4):
            a(f"buffer_load_ushort v{84+j}, v93, s[16:19], 0 offen offset:{j*32}")
            a(f"buffer_load_dword v{88+j}, v92, s[12:15], s30 offen offset:{j*64}{SC}")
    def lvl1():
        a("s_waitcnt vmcnt(0)")
        flag_store(a, 9, 15, "s36", "1")
    g2_compute(a, 1, pre, lvl1)
    stamp(a, 10)
    y_addr(a)
    a("s_waitcnt vmcnt(0)")
    for j in range(4):
        a(f"v_sub_f32 v{88+j}, 1.0, v{88+j}")
        a(f"v_lshlrev_b32 v{84+j}, 16, v{84+j}")
    for j in range(4): a(f"v_mul_f32 v{84+j}, v{84+j}, v{88+j}")
    a("v_lshlrev_b32 v8, 4, v1")
    for i in range(4):
        for j in range(4):
            x = m2_acc(i, j)
            for r in range(4): a(f"v_fma_f32 v{x+r}, v{x+r}, v{88+j}, v{84+j}")
            a(f"buffer_store_dwordx4 {vr(x,4)}, v8, s[12:15], s37 offen offset:{j*1024}{SC}")
        a("s_add_u32 s37, s37, 4096")
    a("v_mov_b32 v9, 0")
    a("s_waitcnt vmcnt(0)")
    flag_store(a, 9, 10, "s38", "1")
    stamp(a, 11)
    stamp_flush(a, 0, 12, 20)
    a("s_endpgm")
    a.label("G_LOADER")
    mlp1_loader(a)
    stamp(a, 6)
    g2_loader(a, 1)
    stamp(a, 10)
    stamp_flush(a, 1, 12, 20)
    a("s_endpgm")

QA, QB, KF, VF, PA, PB, ONES, LA, LB = 16, 24, 32, 40, 48, 56, 64, 68, 72
SA, SB, OA, OB, NMA, NMB = 80, 96, 112, 128, 144, 160
QSET = [176, 200]
VG = 76
BOUND_T = 40.0

def a_role(a):
    R = 4; NS = 16; SLOT = 32768
    pfx = "AT"
    if env("A_MAP", 0) == 0:
        a(f"s_and_b32 s21, s{IDX}, 7")
        a(f"s_lshl_b32 s22, s{XCD}, 1")
        a(f"s_lshr_b32 s29, s{IDX}, 3")
        a("s_add_u32 s22, s22, s29")
    else:
        a(f"s_and_b32 s21, s{XCD}, 1")
        a("s_lshl_b32 s21, s21, 2")
        a(f"s_and_b32 s29, s{IDX}, 3")
        a("s_add_u32 s21, s21, s29")
        a(f"s_lshr_b32 s22, s{XCD}, 1")
        a("s_lshl_b32 s22, s22, 2")
        a(f"s_lshr_b32 s29, s{IDX}, 2")
        a("s_add_u32 s22, s22, s29")
    a("s_cmp_ge_u32 s20, 4")
    a(f"s_cselect_b32 s8, s{P['wq']}, s{P['x']}")
    a(f"s_cselect_b32 s9, s{P['wq']+1}, s{P['x']+1}")
    a("s_mov_b32 s10, 0x200000")
    a("s_cselect_b32 s10, s10, 0x400000")
    a("s_and_b32 s9, s9, 0xffff")
    a("s_mov_b32 s11, 0x20000")
    a("v_lshlrev_b32 v4, 4, v1              ; lane*16")
    a("s_lshl_b32 s27, s20, 12")
    a("s_and_b32 s30, s20, 3                ; st")
    a("s_lshr_b32 s31, s20, 2               ; hp")
    a("v_and_b32 v5, 31, v1                 ; q")
    a("v_lshrrev_b32 v6, 3, v1              ; l/8")
    a("v_and_b32 v7, 7, v1")
    a("s_cmp_ge_u32 s20, 4")
    a(f"s_cbranch_scc1 {pfx}_WQA")
    a("v_xor_b32 v7, v7, v3")
    a("s_lshl_b32 s34, s22, 7")
    a("s_lshl_b32 s35, s20, 5")
    a("s_add_u32 s34, s34, s35")
    a("v_add_u32 v6, s34, v6")
    a("v_lshlrev_b32 v6, 11, v6")
    a("v_lshl_add_u32 v12, v7, 4, v6")
    a("v_xor_b32 v7, 4, v7")
    a("v_lshl_add_u32 v13, v7, 4, v6")
    a("s_movk_i32 s36, 128")
    a(f"s_branch {pfx}_AJ")
    a.label(f"{pfx}_WQA")
    a("v_and_b32 v12, 2, v6")
    a("v_lshlrev_b32 v12, 1, v12")
    a("v_xor_b32 v7, v7, v12")
    a("s_and_b32 s34, s20, 1")
    a("s_lshl_b32 s34, s34, 5")
    a("v_add_u32 v6, s34, v6")
    a("v_lshlrev_b32 v6, 11, v6")
    a("s_lshr_b32 s34, s20, 1")
    a("s_and_b32 s34, s34, 1")
    a("s_lshl_b32 s34, s34, 7")
    a("s_lshl_b32 s35, s21, 8")
    a("s_add_u32 s34, s34, s35")
    a("v_add_u32 v6, s34, v6")
    a("v_lshl_add_u32 v12, v7, 4, v6")
    a("v_mov_b32 v13, v12")
    a(f"s_mov_b32 s36, {64*2048}")
    a.label(f"{pfx}_AJ")
    for i in range(4): a(f"v_add_u32 v{8+i}, {i*(8*2048-1024)}, v{12 + (i&1)}")
    a("s_mov_b32 s24, 0")
    a("s_mov_b32 s25, 0                     ; soffset")
    srd(a, 44, P['w1'], SZ['w1']); srd(a, 48, P['w2'], SZ['w2']); srd(a, 52, P['wo'], SZ['wo'])
    if env("PF_Q", 1):
        srd(a, 56, P['wq'], SZ['wq'])
        a("s_sub_u32 s34, s2, 128")
        a("s_lshl_b32 s34, s34, 3")
        a("s_add_u32 s34, s34, s20")
        a("s_lshl_b32 s34, s34, 7")
        a("v_lshlrev_b32 v14, 17, v2")
        a("s_mov_b64 exec, 0xffff")
        a("buffer_load_dword v254, v14, s[56:59], s34 offen")
        a("s_mov_b64 exec, -1")
    if env("PF_A0", 0):
        a(f"s_lshl_b32 s34, s{IDX}, 3")
        a("s_add_u32 s34, s34, s20")
        a("s_mul_i32 s34, s34, 21")
        a("v_add_u32 v14, s34, v1")
        a("s_mov_b32 s35, 0x12492493")
        a("v_mul_hi_u32 v15, v14, s35           ; /14")
        a("s_movk_i32 s35, 5376")
        a("v_mul_lo_u32 v15, v15, s35           ; row*(7168 - 14*128)")
        a("v_lshl_add_u32 v14, v14, 7, v15")
        a(f"s_lshr_b32 s35, s{XCD}, 1")
        a("s_mul_i32 s35, s35, 1792")
        a("s_mov_b64 exec, 0x1fffff")
        a("buffer_load_dword v254, v14, s[44:47], s35 offen")
        a("s_mov_b64 exec, -1")
    def issue_list():
        o = ["s_add_u32 m0, s24, s27", f"s_add_u32 s24, s24, {SLOT}"]
        for i in range(4): o.append(f"buffer_load_dwordx4 v{8+i}, s[8:11], s25 offen offset:{i*1024}{NTQ} lds")
        o += ["s_add_u32 s25, s25, s36", f"s_and_b32 s24, s24, {SLOT*R-1}"]
        return o
    if not env("A_DELAY", 1):
        for x in issue_list(): a(x)
    XB, WB, XA, WA = 224, 228, 230, 234
    a("s_lshl_b32 s34, s30, 5")
    a("v_add_u32 v6, s34, v5")
    a("v_lshrrev_b32 v7, 1, v6")
    a("v_and_b32 v7, 7, v7")
    a("v_lshrrev_b32 v12, 5, v1             ; h")
    a("v_xor_b32 v7, v7, v12")
    a("v_lshlrev_b32 v6, 7, v6")
    a("v_lshl_add_u32 v6, v7, 4, v6")
    for t in range(4): a(f"v_xor_b32 v{XB+t}, {t*32}, v6")
    a("v_lshrrev_b32 v6, 2, v2              ; r")
    a("v_lshl_add_u32 v7, v12, 3, v6")
    a("v_lshlrev_b32 v7, 7, v7")
    a("v_and_b32 v6, 2, v6")
    a("v_and_b32 v13, 1, v3                 ; jh")
    a("v_or_b32 v6, v6, v13")
    a("v_lshl_add_u32 v7, v6, 5, v7")
    a("v_and_b32 v6, 3, v1")
    a("v_lshl_add_u32 v7, v6, 3, v7")
    a("s_lshl_b32 s34, s31, 13")
    a("s_add_u32 s34, s34, 16384")
    a(f"v_add_u32 v{WB}, s34, v7")
    a(f"v_xor_b32 v{WB+1}, 64, v{WB}")
    for i in range(6): a(f"v_mov_b32 v{XA+i}, v{XB+i}")
    for r in range(32): a(f"v_mov_b32 v{SA+r}, 0")
    for r in range(32): a(f"v_mov_b32 v{OA+r}, 0")
    for r in range(4):
        a(f"v_mov_b32 v{LA+r}, 0"); a(f"v_mov_b32 v{LB+r}, 0"); a(f"v_mov_b32 v{PB+4+r}, 0"); a(f"v_mov_b32 v{VF+4+r}, 0")
    a("v_lshrrev_b32 v7, 2, v2")
    a("v_xor_b32 v7, v7, v3")
    a("v_and_b32 v7, 1, v7")
    a("v_and_b32 v12, 3, v2")
    a("v_or_b32 v7, v7, v12")
    a("v_cmp_eq_u32 vcc, 0, v7")
    a("v_mov_b32 v12, 0x3f803f80")
    a("s_nop 0")
    a(f"v_cndmask_b32 v{ONES}, 0, v12, vcc")
    for r in range(1, 4): a(f"v_mov_b32 v{ONES+r}, v{ONES}")
    T1, T2, TO, TU = 236, 237, 238, 239
    a(f"s_lshl_b32 s34, s{IDX}, 3")
    a("s_add_u32 s34, s34, s20")
    a("s_lshl_b32 s35, s34, 2               ; w1: row = gl>>4")
    a("v_add_u32 v6, s35, v3")
    a("s_movk_i32 s35, 7168")
    a("v_mul_lo_u32 v6, v6, s35")
    a("v_min_u32 v7, 13, v2")
    a("v_lshl_add_u32 v6, v7, 7, v6")
    a(f"s_lshr_b32 s35, s{XCD}, 1")
    a("s_mul_i32 s37, s35, 1792")
    a(f"v_add_u32 v{T1}, s37, v6")
    a(f"s_mul_i32 s37, s{IDX}, 7            ; w2: row = (7*idx + 4*hp)*32 + 8*st + lane/8")
    a("s_lshl_b32 s38, s31, 2")
    a("s_add_u32 s37, s37, s38")
    a("s_lshl_b32 s37, s37, 2")
    a("s_add_u32 s37, s37, s30")
    a("s_lshl_b32 s37, s37, 3")
    a("v_lshrrev_b32 v6, 3, v1")
    a("v_add_u32 v6, s37, v6")
    a("v_lshlrev_b32 v6, 12, v6")
    a("v_and_b32 v7, 7, v1")
    a("v_lshl_add_u32 v6, v7, 7, v6")
    a("s_lshl_b32 s35, s35, 10")
    a(f"v_add_u32 v{T2}, s35, v6")
    a("s_lshl_b32 s34, s34, 13")
    a(f"v_lshl_add_u32 v{TO}, v1, 7, s34")
    a(f"s_and_b32 s34, s{XCD}, 1")
    a("s_lshl_b32 s34, s34, 2")
    a("s_add_u32 s34, s34, s30")
    a("s_mul_i32 s34, s34, 112")
    a(f"s_mul_i32 s35, s{IDX}, 7")
    a("s_add_u32 s34, s34, s35")
    a("s_lshl_b32 s35, s31, 2")
    a("s_add_u32 s34, s34, s35")
    a("s_lshl_b32 s34, s34, 13")
    a(f"s_add_u32 s34, s34, {WS_U}")
    a(f"v_lshl_add_u32 v{TU}, v1, 7, s34")
    def touch(kind, k):
        if not env("PF_A", 1): return
        if kind == "u":
            a(f"s_mov_b32 s34, {k*8192}")
            a(f"buffer_load_dword v254, v{TU}, s[12:15], s34 offen sc1")
            return
        if kind == "w1":
            a(f"s_mov_b32 s34, {k*512*7168}")
            a(f"buffer_load_dword v254, v{T1}, s[44:47], s34 offen{NTP}")
        elif kind == "w2":
            a(f"s_mov_b32 s34, {k*32*4096}")
            a(f"buffer_load_dword v254, v{T2}, s[48:51], s34 offen{NTP}")
        else:
            a(f"s_mov_b32 s34, {k << 20}")
            a(f"buffer_load_dword v254, v{TO}, s[52:55], s34 offen")
    a("s_mov_b32 s26, 0")
    def reads(st, half):
        b = QSET[st]; o = []
        for tt in range(2):
            t = 2 * half + tt
            o.append(f"ds_read_b128 {vr(b+4*tt,4)}, v{XA+t}")
            for e in range(2):
                w = b + 8 + (tt * 2 + e) * 4
                o.append(f"ds_read_b64_tr_b16 {vr(w,2)}, v{WA+e} offset:{t*2048}")
                o.append(f"ds_read_b64_tr_b16 {vr(w+2,2)}, v{WA+e} offset:{t*2048+512}")
        return o
    def mf(st):
        b = QSET[st]; o = []
        for tt in range(2):
            for e in range(2):
                acc = SA if e == 0 else SB
                o.append(f"{M32} {vr(acc,16)}, {vr(b+8+(tt*2+e)*4,4)}, {vr(b+4*tt,4)}, {vr(acc,16)}")
        return o
    upd = [f"s_add_u32 s26, s26, {SLOT}", f"s_and_b32 s26, s26, {SLOT*R-1}"] + [f"v_add_u32 v{XA+i}, s26, v{XB+i}" for i in range(6)]
    def stage(vm, dma, last=False):
        for x in interleave(mf(0), reads(1, 1) + ([] if last else upd), 0, 4): a(x)
        if last:
            a("s_waitcnt lgkmcnt(0)")
            return
        a(f"s_waitcnt vmcnt({vm}) lgkmcnt(0)")
        a("s_barrier")
        for x in interleave(mf(1), reads(0, 0) + (issue_list() if dma else []), 0, 4): a(x)
        a("s_waitcnt lgkmcnt(0)")
    n = 4
    if env("A_DELAY", 1):
        a("s_waitcnt vmcnt(0)")
        for x in issue_list(): a(x)
    a("s_barrier")
    for _ in range(R - 1):
        for x in issue_list(): a(x)
    stamp(a, 1)
    a(f"s_waitcnt vmcnt({(R-1)*n})")
    a("s_barrier")
    stamp(a, 2)
    for x in reads(0, 0): a(x)
    a(f"s_mov_b32 s23, {NS-R}")
    a("s_waitcnt lgkmcnt(0)")
    tag_finish(a)
    a.label(f"{pfx}_QL")
    stage((R-2)*n, True)
    a("s_sub_u32 s23, s23, 1")
    a("s_cmp_lg_u32 s23, 0")
    a(f"s_cbranch_scc1 {pfx}_QL")
    touch("w1", 1)
    for i in range(NS - R, NS - 1):
        stage(((NS - 1) - (i + 1)) * n + (1 if env("PF_A", 1) else 0), False)
    stage(0, False, last=True)
    for x in mf(1): a(x)
    a("s_cmp_eq_u32 s20, 0")
    a(f"s_cbranch_scc0 {pfx}_NP")
    a(f"s_lshl_b32 s28, s{XCD}, 11")
    a(f"s_add_u32 s28, s28, {FL_F1B}")
    poll(a, [(4, "s28", 0), (4, "s28", 1024)], 12, "ATP")
    a.label(f"{pfx}_NP")
    stamp(a, 3)
    a("s_barrier")
    stamp(a, 4)
    a(f"s_mov_b32 s29, {WS_KN}")
    a("v_lshlrev_b32 v12, 2, v1")
    a(f"buffer_load_dword v78, v12, s[12:15], s29 offen{SC}")
    a("s_lshl_b32 s32, s22, 7")
    a("s_lshl_b32 s33, s30, 5")
    a("s_add_u32 s32, s32, s33")
    a("s_lshl_b32 s33, s32, 2")
    a(f"s_add_u32 s33, s33, {WS_G}")
    a("v_lshlrev_b32 v13, 2, v5")
    a(f"buffer_load_dword v{VG}, v13, s[12:15], s33 offen{SC}")
    a("s_lshl_b32 s27, s20, 11              ; w*2048")
    a(f"s_add_u32 s28, s27, {WS_KV}")
    a("s_mov_b32 s24, s27")
    def kv_chunk():
        a("s_mov_b32 m0, s24")
        a("s_add_u32 s24, s24, 16384")
        a(f"buffer_load_dwordx4 v4, s[12:15], s28 offen{SC} lds")
        a(f"buffer_load_dwordx4 v4, s[12:15], s28 offen offset:1024{SC} lds")
        a("s_add_u32 s28, s28, 16384")
    for c in range(2): kv_chunk()
    cq = LOG2E / (DH ** 0.5)
    a(f"v_mov_b32 v14, {fhex(cq)}")
    a(f"v_mov_b32 v15, {fhex(cq)}")
    for r in range(0, 32, 2): a(f"v_pk_mul_f32 {vr(SA+r,2)}, {vr(SA+r,2)}, v[14:15]")
    for i in range(16): a(f"v_cvt_pk_bf16_f32 v{QA+i}, v{SA+2*i}, v{SA+2*i+1}")
    a(f"v_pk_mul_f32 v[12:13], {vr(SA,2)}, {vr(SA,2)}")
    a(f"v_pk_mul_f32 v[14:15], {vr(SB,2)}, {vr(SB,2)}")
    for r in range(2, 16, 2):
        a(f"v_pk_fma_f32 v[12:13], {vr(SA+r,2)}, {vr(SA+r,2)}, v[12:13]")
        a(f"v_pk_fma_f32 v[14:15], {vr(SB+r,2)}, {vr(SB+r,2)}, v[14:15]")
    a("v_add_f32 v12, v12, v13")
    a("v_add_f32 v13, v14, v15")
    a("v_mov_b32 v14, v12")
    a("v_mov_b32 v15, v13")
    a("s_nop 1")
    a("v_permlane32_swap_b32 v12, v14")
    a("v_permlane32_swap_b32 v13, v15")
    a("v_add_f32 v12, v12, v14")
    a("v_add_f32 v13, v13, v15")
    a("s_waitcnt vmcnt(5)")
    wave_reduce(a, [78], op="v_max_f32")
    a("s_nop 0")
    a("v_readlane_b32 s37, v78, 63")
    a(f"v_mov_b32 v14, {fhex(1.03)}")
    a("s_nop 0")
    a("v_mul_f32 v14, s37, v14")
    a("v_mul_f32 v12, v12, v14")
    a("v_mul_f32 v13, v13, v14")
    a("v_sqrt_f32 v12, v12")
    a("v_sqrt_f32 v13, v13")
    a(f"v_mov_b32 v14, {fhex(BOUND_T)}")
    a("v_max_f32 v15, v12, v13")
    a("v_cmp_nle_f32 vcc, v15, v14")
    a("s_nop 1")
    a(f"s_cbranch_vccz {pfx}_FAST")
    a(f"s_mov_b32 s34, {WS_KV}")
    a("v_mov_b32 v12, 0xff800000")
    a("v_mov_b32 v13, 0xff800000")
    a("s_mov_b32 s23, 64")
    a.label(f"{pfx}_MX")
    a(f"buffer_load_dwordx4 {vr(PA,4)}, v4, s[12:15], s34 offen{SC}")
    a(f"buffer_load_dwordx4 {vr(PA+4,4)}, v4, s[12:15], s34 offen offset:1024{SC}")
    a("s_add_u32 s34, s34, 4096")
    a("s_waitcnt vmcnt(0)")
    a(f"{M32} {vr(SA,16)}, {vr(PA,4)}, {vr(QA,4)}, 0")
    a(f"{M32} {vr(SB,16)}, {vr(PA,4)}, {vr(QB,4)}, 0")
    a(f"{M32} {vr(SA,16)}, {vr(PA+4,4)}, {vr(QA+4,4)}, {vr(SA,16)}")
    a(f"{M32} {vr(SB,16)}, {vr(PA+4,4)}, {vr(QB+4,4)}, {vr(SB,16)}")
    a("s_nop 15")
    for r in range(0, 16, 2): a(f"v_max3_f32 v12, v12, v{SA+r}, v{SA+r+1}")
    for r in range(0, 16, 2): a(f"v_max3_f32 v13, v13, v{SB+r}, v{SB+r+1}")
    a("s_sub_u32 s23, s23, 1")
    a("s_cmp_lg_u32 s23, 0")
    a(f"s_cbranch_scc1 {pfx}_MX")
    a("v_mov_b32 v14, v12")
    a("v_mov_b32 v15, v13")
    a("s_nop 1")
    a("v_permlane32_swap_b32 v12, v14")
    a("v_permlane32_swap_b32 v13, v15")
    a("v_max_f32 v12, v12, v14")
    a("v_max_f32 v13, v13, v15")
    a.label(f"{pfx}_FAST")
    for r in range(16):
        a(f"v_sub_f32 v{NMA+r}, 0, v12"); a(f"v_sub_f32 v{NMB+r}, 0, v13")
    a("v_mov_b32 v5, v4")
    a("v_add_u32 v6, 16384, v4              ; vKn")
    a("s_waitcnt vmcnt(0)")
    a("s_barrier")
    a(f"ds_read_b128 {vr(KF,4)}, v5")
    a(f"ds_read_b128 {vr(KF+4,4)}, v5 offset:1024")
    a(f"ds_read_b128 {vr(VF,4)}, v5 offset:2048")
    a("s_mov_b32 s23, 0                     ; chunk c")
    a("s_mov_b32 s26, 16384")
    sched = [0, 1, 2, 3, 4, 5, 6, 7, 23, 24, 25, 26, 27, 39]
    mask = sum(1 << b for b in sched)
    a(f"s_mov_b32 s40, 0x{mask & 0xffffffff:x}")
    a(f"s_mov_b32 s41, 0x{mask >> 32:x}")
    a("s_waitcnt lgkmcnt(1)")
    a(f"{M32} {vr(SA,16)}, {vr(KF,4)}, {vr(QA,4)}, {vr(NMA,16)}")
    a(f"{M32} {vr(SA,16)}, {vr(KF+4,4)}, {vr(QA+4,4)}, {vr(SA,16)}")
    a("s_nop 10")
    def step(cur, tile):
        if cur == 'A':
            S_, P_, O_, L_ = SA, PA, OA, LA
            Sn, Qn, NMn, Po, Oo, Lo = SB, QB, NMB, PB, OB, LB
        else:
            S_, P_, O_, L_ = SB, PB, OB, LB
            Sn, Qn, NMn, Po, Oo, Lo = SA, QA, NMA, PA, OA, LA
        e = lambda r: a(f"v_exp_f32 v{S_+r}, v{S_+r}")
        c = lambda i: a(f"v_cvt_pk_bf16_f32 v{P_+i}, v{S_+2*i}, v{S_+2*i+1}")
        nreg, noff = ("v5", (tile + 1) * 4096) if tile < 3 else ("v6", 0)
        if cur == 'A' and env("AT_PRIO", 1): a(f"s_setprio {3 - tile}")
        if cur == 'B': a("s_waitcnt lgkmcnt(1)")
        a(f"{M32} {vr(Sn,16)}, {vr(KF,4)}, {vr(Qn,4)}, {vr(NMn,16)}")
        e(0); e(1); e(2); e(3)
        a(f"{M32} {vr(Sn,16)}, {vr(KF+4,4)}, {vr(Qn+4,4)}, {vr(Sn,16)}")
        if cur == 'A':
            a(f"ds_read_b128 {vr(KF,4)}, {nreg} offset:{noff}")
            a(f"ds_read_b128 {vr(KF+4,4)}, {nreg} offset:{noff+1024}")
        c(0); c(1); e(4); e(5); e(6)
        if cur == 'B': a("s_waitcnt lgkmcnt(0)")
        a(f"{M32} {vr(Oo,16)}, {vr(VF+4,4)}, {vr(Po+4,4)}, {vr(Oo,16)}")
        if cur == 'A':
            a(f"ds_read_b128 {vr(VF+4,4)}, v5 offset:{tile*4096+3072}")
        e(7); c(2); c(3); e(8); e(9)
        a(f"{M16} {vr(Lo,4)}, {vr(ONES,4)}, {vr(Po+4,4)}, {vr(Lo,4)}")
        e(10); e(11)
        if cur == 'A': a("s_waitcnt lgkmcnt(3)")
        a(f"{M32} {vr(O_,16)}, {vr(VF,4)}, {vr(P_,4)}, {vr(O_,16)}")
        if cur == 'B':
            a(f"ds_read_b128 {vr(VF,4)}, {nreg} offset:{noff+2048}")
        c(4); c(5); e(12); e(13); e(14)
        a(f"{M16} {vr(L_,4)}, {vr(ONES,4)}, {vr(P_,4)}, {vr(L_,4)}")
        e(15); c(6); c(7)
    stamp(a, 5)
    a(".p2align 6")
    a.label(f"{pfx}_ML")
    def kv_maybe(tile):
        a(f"s_bitcmp1_b32 s40, {tile}")
        a(f"s_cbranch_scc0 {pfx}_NK{tile}")
        kv_chunk()
        a("s_cmp_ge_u32 s24, 163840")
        a("s_cselect_b32 s24, s27, s24")
        a.label(f"{pfx}_NK{tile}")
    plan = eval(os.environ.get("PF_PLAN", "{1:('w1',2), 5:('w1',3), 11:('w2',0), 17:('w2',1), 21:('w2',2), 25:('w2',3), 27:('wo',0), 29:('wo',1)}"))
    def touch_point(pt):
        L = f"{pfx}_TP{pt}"
        pm = sum(1 << c for c in plan)
        a("s_lshl_b32 s35, s23, 1")
        a("s_sub_u32 s35, s35, s31")
        if pt: a("s_add_u32 s35, s35, 1")
        a(f"s_mov_b32 s34, 0x{pm:x}")
        a("s_bitcmp1_b32 s34, s35")
        a(f"s_cbranch_scc0 {L}_N")
        for c, (kind, k) in plan.items():
            a(f"s_cmp_eq_u32 s35, {c}")
            a(f"s_cbranch_scc0 {L}_{c}")
            if kind in ("w2", "u") and k == 3:
                a("s_cmp_eq_u32 s31, 0")
                a(f"s_cbranch_scc0 {L}_N")
            touch(kind, k)
            a(f"s_branch {L}_N")
            a.label(f"{L}_{c}")
        a.label(f"{L}_N")
    for tile in range(3):
        kv_maybe(tile)
        if tile == 1: touch_point(0)
        step('A', tile); step('B', tile)
    a("s_and_b32 s34, s23, 3")
    a("s_cmp_eq_u32 s34, 1")
    a(f"s_cbranch_scc0 {pfx}_NB")
    a("s_waitcnt vmcnt(0)")
    a("s_barrier")
    a.label(f"{pfx}_NB")
    touch_point(1)
    kv_maybe(3)
    step('A', 3); step('B', 3)
    a("s_lshr_b64 s[40:41], s[40:41], 4")
    a("s_add_u32 s26, s26, 16384")
    a("s_cmp_ge_u32 s26, 163840")
    a("s_cselect_b32 s26, 0, s26")
    a("v_mov_b32 v5, v6")
    a("v_add_u32 v6, s26, v4")
    a("s_add_u32 s23, s23, 1")
    a("s_cmp_lt_u32 s23, 16")
    a(f"s_cbranch_scc1 {pfx}_ML")
    stamp(a, 6)
    a(f"{M32} {vr(OB,16)}, {vr(VF+4,4)}, {vr(PB+4,4)}, {vr(OB,16)}")
    a(f"{M16} {vr(LB,4)}, {vr(ONES,4)}, {vr(PB+4,4)}, {vr(LB,4)}")
    a("s_setprio 0")
    a("s_lshl_b32 s34, s22, 18")
    a("s_lshl_b32 s35, s21, 2")
    a("s_lshl_b32 s33, s31, 1")
    a("s_add_u32 s35, s35, s33")
    a("s_lshl_b32 s35, s35, 13")
    a("s_add_u32 s34, s34, s35")
    a("s_lshl_b32 s35, s30, 11              ; 2st*1024")
    a("s_add_u32 s34, s34, s35")
    a(f"s_add_u32 s34, s34, {WS_O}")
    a("s_add_u32 s35, s34, 8192")
    a("v_and_b32 v7, 1, v3")
    a("v_lshlrev_b32 v7, 10, v7")
    a("v_lshrrev_b32 v12, 1, v3")
    a("v_lshl_add_u32 v7, v12, 8, v7")
    a("v_lshl_add_u32 v7, v2, 4, v7")
    a("s_waitcnt lgkmcnt(0)")
    for (O_, L_, P_, so) in ((OA, LA, PA, 34), (OB, LB, PB, 35)):
        a(f"v_rcp_f32 v12, v{L_}")
        a("s_nop 0")
        a(f"v_mul_f32 v12, v12, v{VG}")
        for r in range(16): a(f"v_mul_f32 v{O_+r}, v{O_+r}, v12")
        for p in range(2):
            a(f"v_cvt_pk_bf16_f32 v{P_+4*p}, v{O_+4*p}, v{O_+4*p+1}")
            a(f"v_cvt_pk_bf16_f32 v{P_+4*p+1}, v{O_+4*p+2}, v{O_+4*p+3}")
            a(f"v_cvt_pk_bf16_f32 v{P_+4*p+2}, v{O_+8+4*p}, v{O_+8+4*p+1}")
            a(f"v_cvt_pk_bf16_f32 v{P_+4*p+3}, v{O_+8+4*p+2}, v{O_+8+4*p+3}")
            a(f"buffer_store_dwordx4 {vr(P_+4*p,4)}, v7, s[12:15], s{so} offen offset:{p*512}{SC}")
    a("s_waitcnt vmcnt(0)")
    a("s_barrier")
    stamp(a, 7)
    a("s_cmp_ge_u32 s20, 4")
    a("s_cbranch_scc1 A_LOADER")
    g2_compute(a, 2)
    stamp(a, 10)
    srd(a, 48, P['out'], SZ['out'])
    y_addr(a)
    a("v_mov_b32 v8, 0")
    poll(a, [(8, "s38", 0)], 9, "YP")
    stamp(a, 11)
    a("v_lshlrev_b32 v8, 4, v1")
    YB = 16
    for i in range(4):
        for j in range(4):
            a(f"buffer_load_dwordx4 {vr(YB + (i*4+j)*4, 4)}, v8, s[12:15], s37 offen offset:{j*1024}{SC}")
        a("s_add_u32 s37, s37, 4096")
    a("s_lshl_b32 s29, s22, 7")
    a("s_lshl_b32 s30, s28, 6")
    a("s_add_u32 s29, s29, s30")
    a("v_add_u32 v4, s29, v2")
    a("v_lshlrev_b32 v92, 11, v4")
    a("s_lshl_b32 s30, s21, 8")
    a("s_lshl_b32 s31, s27, 7")
    a("s_add_u32 s30, s30, s31")
    a("v_add_u32 v92, s30, v92")
    a("v_and_b32 v5, 1, v3")
    a("v_lshl_add_u32 v92, v5, 5, v92")
    a("v_lshrrev_b32 v5, 1, v3")
    a("v_lshl_add_u32 v92, v5, 4, v92")
    for sidx in range(4): a(f"s_mov_b32 s{40+sidx}, {sidx*16*2048}")
    for ip in range(2):
        a(f"s_waitcnt vmcnt({8 if ip == 0 else 4})")
        for j in range(4):
            X, Y = m2_acc(2*ip, j), m2_acc(2*ip+1, j)
            yx, yy = YB + ((2*ip)*4+j)*4, YB + ((2*ip+1)*4+j)*4
            o = 96 + (j*2+ip) * 4 if False else 192 + (j*2+ip) * 4
            for hh in range(2):
                a(f"v_pk_add_f32 {vr(X+2*hh,2)}, {vr(X+2*hh,2)}, {vr(yx+2*hh,2)}")
                a(f"v_pk_add_f32 {vr(Y+2*hh,2)}, {vr(Y+2*hh,2)}, {vr(yy+2*hh,2)}")
            a(f"v_cvt_pk_bf16_f32 v{o}, v{X}, v{X+1}")
            a(f"v_cvt_pk_bf16_f32 v{o+1}, v{X+2}, v{X+3}")
            a(f"v_cvt_pk_bf16_f32 v{o+2}, v{Y}, v{Y+1}")
            a(f"v_cvt_pk_bf16_f32 v{o+3}, v{Y+2}, v{Y+3}")
            a("s_nop 1")
            a(f"v_permlane16_swap_b32 v{o}, v{o+2}")
            a(f"v_permlane16_swap_b32 v{o+1}, v{o+3}")
            a(f"buffer_store_dwordx4 {vr(o,4)}, v92, s[48:51], s{40+j} offen offset:{ip*64}")
    stamp(a, 12)
    if PROF["on"]: a("s_waitcnt vmcnt(0)")
    stamp(a, 13)
    stamp_flush(a, 2, 12, 20)
    a("s_endpgm")
    a.label("A_LOADER")
    a("s_cmp_eq_u32 s20, 4")
    a("s_cbranch_scc0 A_NF")
    a("s_lshl_b32 s28, s22, 3")
    a("s_add_u32 s28, s28, s21")
    a("s_lshl_b32 s28, s28, 6")
    a(f"s_add_u32 s28, s28, {FL_F3}")
    a("v_mov_b32 v8, 0")
    flag_store(a, 8, 9, "s28", "1")
    a.label("A_NF")
    g2_loader(a, 2)
    stamp(a, 10)
    a("s_cmp_eq_u32 s2, 128")
    a("s_cbranch_scc0 A_LEND")
    a("s_cmp_eq_u32 s20, 4")
    a("s_cbranch_scc0 A_LEND")
    a("v_lshlrev_b32 v16, 6, v1")
    a(f"s_mov_b32 s28, {FL_F3}")
    a(f"s_mov_b32 s29, {FL_F3 + 4096}")
    poll(a, [(16, "s28", 0), (16, "s29", 0)], 17, "EP")
    a("v_mov_b32 v8, 0")
    a(f"s_mov_b32 s28, {FL_EPOCH}")
    flag_store(a, 8, 9, "s28", "1")
    a.label("A_LEND")
    stamp_flush(a, 3, 12, 20)
    a("s_endpgm")

def gen_mega(a, name):
    kernel_begin(a, name)
    a("s_cmp_ge_u32 s2, 256")
    a("s_cbranch_scc1 MK_END")
    a("s_load_dwordx16 s[64:79], s[0:1], 0")
    a("s_load_dwordx8 s[80:87], s[0:1], 64")
    a("s_load_dwordx4 s[88:91], s[0:1], 96")
    stamp_init(a)
    a("v_lshrrev_b32 v2, 6, v0")
    a("v_and_b32 v1, 63, v0")
    a("v_readfirstlane_b32 s20, v2")
    a("v_and_b32 v2, 15, v1")
    a("v_lshrrev_b32 v3, 4, v1")
    a(f"s_and_b32 s{XCD}, s2, 7")
    a(f"s_lshr_b32 s{IDX}, s2, 3")
    a(f"s_mov_b32 s27, {FL_EPOCH}")
    a("s_waitcnt lgkmcnt(0)")
    stamp(a, 0)
    a(f"s_load_dword s{TAG}, s[90:91], s27")
    srd(a, 12, P['ws'], WS_SIZE)
    a(f"s_cmp_ge_u32 s{IDX}, 16")
    a(f"s_cbranch_scc1 A_ROLE")
    g_role(a)
    a.label("A_ROLE")
    a(f"s_sub_u32 s{IDX}, s{IDX}, 16")
    a_role(a)
    a.label("MK_END")
    a("s_endpgm")
    return kernel_desc(name, 256)
```

```python
import sys
sys.path.insert(0, "gen")
from common import *
from k1 import gen_k1, K1_LDS
from gemm import gen_mlp1, gen_mlp2
from attn import gen_attn

HDR = open("gated_mix__grouped_kv_mqa__mixer_token_mlp__prompt.s.ref").read().split("; Override launch")[0]

def build_v1():
    a = Asm()
    launches = [("prep_kernel", 256, 512, K1_LDS), ("attn_kernel", 128, 512, 163840),
                ("mlp1_kernel", 128, 512, 147456), ("mlp2_kernel", 128, 512, 163840)]
    descs = [gen_k1(a), gen_attn(a), gen_mlp1(a), gen_mlp2(a)]
    return finish(a, launches, descs)

def build_mega():
    from mega import gen_mega
    a = Asm()
    name = "gated_mix__grouped_kv_mqa__mixer_token_mlp__prompt_kernel"
    descs = [gen_mega(a, name)]
    return finish(a, [(name, 256, 512, 163840)], descs)

def finish(a, launches, descs):
    body = a.text()
    probs = check_text(body)
    for p in probs: print("HAZARD", p)
    t = HDR
    import os
    for k, g, b, l in launches:
        if len(launches) == 1 and os.environ.get("SINGLE"):
            t += f"; @launch grid=({g},1,1) block=({b},1,1) lds={l}\n"
        else:
            t += f"; @launch kernel={k} grid=({g},1,1) block=({b},1,1) lds={l}\n"
    t += '.amdgcn_target "amdgcn-amd-amdhsa--gfx950"\n.text\n' + body
    t += '.section .rodata,"a"\n'
    for d in descs: t += ".p2align 6\n" + d
    return t

if __name__ == "__main__":
    which = sys.argv[1] if len(sys.argv) > 1 else "v1"
    out = sys.argv[2] if len(sys.argv) > 2 else "gated_mix__grouped_kv_mqa__mixer_token_mlp__prompt.s"
    if len(sys.argv) > 3 and sys.argv[3] == "prof": PROF["on"] = True
    t = globals()["build_" + which]()
    open(out, "w").write(t)
    print("wrote", out, len(t), "bytes")
```

```python
import re

class Asm:
    def __init__(self):
        self.lines = []
    def __call__(self, s):
        for l in s.split("\n"):
            l = l.rstrip()
            if l.strip() == "":
                continue
            self.lines.append(l if (l.startswith(" ") or l.rstrip().endswith(":") or l.startswith(".") or l.startswith(";")) else "    " + l)
    def c(self, s):
        self.lines.append("    ; " + s)
    def label(self, n):
        self.lines.append(n + ":")
    def text(self):
        return "\n".join(self.lines) + "\n"

def vr(b, n=1):
    return f"v{b}" if n == 1 else f"v[{b}:{b+n-1}]"
def sr(b, n=1):
    return f"s{b}" if n == 1 else f"s[{b}:{b+n-1}]"

def interleave(main, side, first=0, last=None, per=None):
    n = len(main)
    if last is None: last = n
    slots = [[] for _ in range(n)]
    m = len(side)
    span = last - first
    for j, s in enumerate(side):
        slots[first + j * span // m].append(s)
    out = []
    for i in range(n):
        out.append(main[i]); out.extend(slots[i])
    return out

_reg = re.compile(r"^(-?)(?:abs\()?\|?([vsa])(?:(\d+)|\[(\d+):(\d+)\])\)?\|?$")
def regs_of(op):
    op = op.strip()
    if op in ("vcc",): return {"vcc"}
    if op in ("exec",): return {"exec"}
    if op == "m0": return {"m0"}
    m = _reg.match(op)
    if not m: return set()
    k = m.group(2)
    if m.group(3) is not None: return {f"{k}{int(m.group(3))}"}
    return {f"{k}{i}" for i in range(int(m.group(4)), int(m.group(5)) + 1)}

TRANS = ("v_exp_", "v_log_", "v_rcp_", "v_rsq_", "v_sqrt_", "v_sin_", "v_cos_")
def parse(line):
    l = line.split(";")[0].strip()
    if not l or l.endswith(":") or l.startswith("."): return None
    parts = l.split(None, 1)
    mn = parts[0]
    ops = []
    if len(parts) > 1:
        depth = 0; cur = ""
        for ch in parts[1]:
            if ch == "[": depth += 1
            if ch == "]": depth -= 1
            if ch == "," and depth == 0: ops.append(cur.strip()); cur = ""
            else: cur += ch
        ops.append(cur.strip())
    mods = ""
    if ops:
        t = ops[-1].split(None, 1)
        ops[-1] = t[0]
        if len(t) > 1: mods = t[1]
    d = dict(mn=mn, ops=ops, mods=mods, w=set(), r=set(), kind="other", text=l)
    if mn.startswith("v_mfma"):
        d["kind"] = "mfma"; d["w"] = regs_of(ops[0]); d["A"] = regs_of(ops[1]); d["B"] = regs_of(ops[2]); d["C"] = regs_of(ops[3])
        d["r"] = d["A"] | d["B"] | d["C"]; d["passes"] = 8 if "32x32" in mn else 4
    elif mn.startswith("v_"):
        d["kind"] = "valu"
        if mn.startswith("v_cmp"):
            d["w"] = regs_of(ops[0]); rs = ops[1:]
            if mn.startswith("v_cmpx"): d["w"] |= {"exec"}
        elif mn.startswith("v_permlane") and "swap" in mn:
            d["w"] = regs_of(ops[0]) | regs_of(ops[1]); rs = ops
        elif "_co_" in mn:
            d["w"] = regs_of(ops[0]) | regs_of(ops[1]); rs = ops[2:]
        else:
            d["w"] = regs_of(ops[0]); rs = ops[1:]
            if mn.startswith("v_fmac") or mn.startswith("v_dot2c") or mn.startswith("v_writelane") or "dpp" in mn or "sdwa" in mn: rs = ops
        for o in rs: d["r"] |= regs_of(o)
        d["trans"] = mn.startswith(TRANS)
        d["dpp"] = "dpp" in mn
    elif mn.startswith("buffer_") or mn.startswith("global_"):
        d["kind"] = "vmem"
        islds = " lds" in (" " + mods) or "load_lds" in mn
        if "load" in mn and not islds:
            d["w"] = regs_of(ops[0]); rs = ops[1:]
        elif "atomic" in mn and "sc0" in mods:
            d["w"] = regs_of(ops[0]); rs = ops
        else:
            rs = ops
        for o in rs: d["r"] |= regs_of(o)
        d["lds"] = islds
        d["widestore"] = ("store" in mn and ("x4" in mn or "x3" in mn))
        if d["widestore"]:
            d["data"] = regs_of(ops[0]) if mn.startswith("buffer_") else regs_of(ops[1])
    elif mn.startswith("ds_"):
        d["kind"] = "ds"
        if "read" in mn or "permute" in mn or "swizzle" in mn or "rtn" in mn:
            d["w"] = regs_of(ops[0]); rs = ops[1:]
        else: rs = ops
        for o in rs: d["r"] |= regs_of(o)
    elif mn.startswith("s_"):
        d["kind"] = "salu"
        if mn in ("s_nop", "s_waitcnt", "s_barrier", "s_endpgm", "s_sleep", "s_setprio") or mn.startswith("s_cbranch") or mn == "s_branch" or mn.startswith("s_cmp"):
            for o in ops: d["r"] |= regs_of(o)
        else:
            d["w"] = regs_of(ops[0]) if ops else set()
            for o in ops[1:]: d["r"] |= regs_of(o)
            if "saveexec" in mn: d["w"] |= {"exec"}
    return d

def states(d):
    if d["mn"] == "s_nop": return int(d["ops"][0], 0) + 1
    return 1

def check_seq(seq, where=""):
    probs = []
    for i, c in enumerate(seq):
        dist = 0
        for j in range(i - 1, max(-1, i - 24), -1):
            p = seq[j]
            need = 0; why = ""
            vw = {x for x in p["w"] if x[0] == "v" and x != "vcc"}
            sw = {x for x in p["w"] if x[0] == "s" or x == "vcc"}
            if p["kind"] == "valu":
                if c["kind"] == "mfma" and vw & c["r"]: need, why = 2, "valu->mfma src"
                if c["kind"] == "mfma" and "exec" in p["w"]: need, why = 4, "exec->mfma"
                if p.get("trans") and c["kind"] == "valu" and not c.get("trans") and vw & c["r"]: need, why = max(need, 1), "trans->valu"
                if c["kind"] == "valu" and c["mn"].startswith("v_permlane") and vw & c["r"]: need, why = 2, "valu->permlane"
                if c["kind"] == "valu" and c.get("dpp") and vw & c["r"]: need, why = 2, "valu->dpp"
                if c["kind"] == "valu" and c.get("dpp") and "exec" in p["w"]: need, why = 5, "exec->dpp"
                if c["kind"] == "valu" and (c["mn"].startswith("v_readlane") or c["mn"].startswith("v_readfirstlane")) and vw & c["r"]: need, why = max(need, 1), "valu->readlane"
                if c["kind"] == "vmem" and sw & c["r"]: need, why = 5, "valu sgpr->vmem"
                if c["kind"] == "valu" and sw & c["r"]: need, why = max(need, 2), "valu sgpr->valu"
                if c["kind"] == "valu" and "vcc" in sw and ("cndmask" in c["mn"]) and "vcc" in c["r"]: need, why = max(need, 2), "vcc->cndmask"
                if "sdwa" in p["mn"] and c["kind"] == "valu" and vw & (c["r"] | c["w"]): need, why = max(need, 1), "sdwa->valu"
            if p["kind"] == "mfma":
                ps = p["passes"]
                big = 12 if ps == 8 else 8
                if c["kind"] == "mfma":
                    if p["w"] & (c["A"] | c["B"]): need, why = big, "mfma D->mfma A/B"
                    elif p["w"] & c["C"]:
                        if not (p["w"] == c["C"] and ps == c["passes"]): need, why = (10 if ps == 8 else 6), "mfma D->mfma C overlap"
                    elif p["w"] & c["w"]:
                        need, why = (10 if ps == 8 else 6), "mfma D->mfma D WAW(conservative)"
                elif c["kind"] in ("valu", "vmem", "ds"):
                    if p["w"] & (c["r"] | c["w"]): need, why = big, "mfma D->valu/mem"
                    elif c["kind"] == "valu" and p["C"] & c["w"]: need, why = (7 if ps == 8 else 3), "mfma C WAR"
            if p["kind"] == "salu" and "m0" in p["w"] and c["kind"] == "vmem" and c.get("lds"): need, why = 1, "m0->dma"
            if p["kind"] == "vmem" and p.get("widestore") and p["data"] & c["w"]:
                need, why = (2 if c["kind"] == "valu" else 1), "store data WAR"
            if need > dist:
                probs.append(f"{where}: [{why}] need {need} have {dist}: '{p['text']}' -> '{c['text']}'")
            dist += states(p)
            if dist >= 20: break
    return probs

def check_text(text):
    lines = text.split("\n")
    ins = []; labels = {}
    for l in lines:
        s = l.split(";")[0].strip()
        if s.endswith(":") and not s.startswith("."):
            labels[s[:-1]] = len(ins); continue
        d = parse(l)
        if d and not d["mn"].startswith("."): ins.append(d)
    probs = []
    seg = []
    for d in ins:
        seg.append(d)
        if d["mn"] in ("s_branch", "s_endpgm"):
            probs += check_seq(seg, "linear"); seg = []
    probs += check_seq(seg, "linear")
    for i, d in enumerate(ins):
        if d["mn"].startswith("s_cbranch") or d["mn"] == "s_branch":
            t = labels.get(d["ops"][0])
            if t is None: continue
            pre = ins[max(0, i - 24):i + 1]
            for k in range(len(pre) - 2, -1, -1):
                if pre[k]["mn"] in ("s_branch", "s_endpgm"): pre = pre[k + 1:]; break
            post = []
            for x in ins[t:t + 24]:
                post.append(x)
                if x["mn"] in ("s_branch", "s_endpgm"): break
            probs += check_seq(pre + post, f"edge->{d['ops'][0]}")
    return sorted(set(probs))

_VOP3_ONLY = ("v_mfma", "v_cvt_pk_bf16", "v_pk_", "v_fma_f32", "v_lshl_add", "v_add3", "v_max3", "v_mul_lo", "v_mul_hi",
              "v_perm_b32", "v_dot2_f32", "v_readlane", "v_writelane", "v_mad_", "v_bfe", "v_and_or", "v_lshl_or", "v_add_lshl")
def _is_inline(tok):
    try:
        v = int(tok, 0); return -16 <= v <= 64
    except ValueError:
        pass
    return tok in ("0.5", "-0.5", "1.0", "-1.0", "2.0", "-2.0", "4.0", "-4.0")
def isize(line):
    d = parse(line)
    if d is None: return 0
    mn = d["mn"]
    if mn.startswith(("ds_", "buffer_", "global_", "s_load", "s_memtime", "s_memrealtime")): return 8
    if mn.startswith(_VOP3_ONLY) or mn.endswith("_e64") or "dpp" in mn or "sdwa" in mn: return 8
    if mn in ("s_nop", "s_waitcnt", "s_barrier", "s_sleep", "s_setprio", "s_endpgm", "s_movk_i32") or mn.startswith("s_cbranch") or mn == "s_branch": return 4
    lit = False
    for o in d["ops"][(0 if mn.startswith(("s_cmp", "s_bitcmp")) else 1):]:
        if re.match(r"^-?(0x[0-9a-fA-F]+|\d+)$", o) and not _is_inline(o): lit = True
    if mn.startswith("v_cmp") and not d["ops"][0] == "vcc": return 8
    return 8 if lit else 4
def align8(lines):
    out = list(lines); off = 0; lastv = None
    for i, l in enumerate(out):
        sz = isize(l)
        if sz == 0: continue
        if sz == 8:
            if off % 8 and lastv is not None:
                t = out[lastv].strip().split(None, 1)
                out[lastv] = "    " + t[0] + "_e64 " + t[1]
                off += 4
            lastv = None
        else:
            mn = l.strip().split()[0]
            if mn.startswith("v_") and not mn.startswith(("v_permlane", "v_readfirstlane")): lastv = i
        off += sz
    return out
```

```python
import os
from common import *

def env(n, d): return int(os.environ.get(n, d))

WS_FL = 17 << 20
FL_EPOCH = WS_FL
FL_F1 = WS_FL + 0x10000
FL_F1B = WS_FL + 0x20000
FL_F2 = WS_FL + 0x80000
FL_F3 = WS_FL + 0xa0000
FL_F1C = WS_FL + 0x30000
FL_F4 = WS_FL + 0x50000
WS_Y = 32 << 20
WS_SIZE = 48 << 20
P = dict(x=64, wq=66, wk=68, wv=70, wo=72, w1=76, b1=78, w2=80, b2=82, gw=84, out=86, ws=90)
TAG, XCD, IDX = 92, 93, 98
M32 = "v_mfma_f32_32x32x16_bf16"
M16 = "v_mfma_f32_16x16x32_bf16"
SC = " sc1"
NTW = " nt" if env("NT_W", 0) else ""
NTQ = " nt" if env("NT_Q", 0) else ""
NTP = " nt" if env("NT_P", 0) else ""
NTX = " nt" if env("NT_X", 1) else ""
_uid = [0]

def poll(a, loads, tmp, name, sleep=1):
    _uid[0] += 1
    L = f"{name}_{_uid[0]}"
    a("s_mov_b32 s99, 0x40000")
    a.label(f"{L}_P")
    for k, (v, so, off) in enumerate(loads):
        a(f"buffer_load_dword v{tmp+k}, v{v}, s[12:15], {so} offen offset:{off} sc1")
    a("s_waitcnt vmcnt(0)")
    for k in range(len(loads)):
        a(f"v_xor_b32 v{tmp+k}, s{TAG}, v{tmp+k}")
    for k in range(1, len(loads)):
        a(f"v_or_b32 v{tmp}, v{tmp}, v{tmp+k}")
    a(f"v_cmp_ne_u32 vcc, 0, v{tmp}")
    a("s_sub_u32 s99, s99, 1")
    a(f"s_cbranch_vccz {L}_D")
    a(f"s_sleep {sleep}")
    a("s_cmp_lg_u32 s99, 0")
    a(f"s_cbranch_scc1 {L}_P")
    a.label(f"{L}_D")

def flag_store(a, vaddr, vdat, soff, mask=None):
    a(f"v_mov_b32 v{vdat}, s{TAG}")
    a(f"v_lshlrev_b32 v{vaddr}, 2, v1")
    a("s_mov_b32 exec_hi, 0")
    a(f"buffer_store_dword v{vdat}, v{vaddr}, s[12:15], {soff} offen sc1")
    a("s_mov_b32 exec_hi, -1")

def tag_finish(a):
    a(f"s_mul_i32 s{TAG}, s{TAG}, 1664525")
    a(f"s_add_u32 s{TAG}, s{TAG}, 1013904223")

def slot_advance(sreg, stride, nslots):
    return [f"s_add_u32 s{sreg}, s{sreg}, {stride}",
            f"s_cmp_eq_u32 s{sreg}, {stride*nslots}",
            f"s_cselect_b32 s{sreg}, 0, s{sreg}"]

LW, LX, LH = 0, 65536, 131072
L1T, L1F = 200, 208
BIAS = 240
def g_prep(a):
    srd(a, 8, P['x'], SZ['x'])
    a(f"s_and_b32 s26, s{IDX}, 1            ; kv")
    a(f"s_lshl_b32 s27, s{XCD}, 8")
    a(f"s_lshl_b32 s28, s{IDX}, 4")
    a("s_add_u32 s35, s27, s28")
    a("s_and_b32 s34, s35, 0xffffffe0")
    a(f"s_lshl_b32 s33, s{XCD}, 4")
    a(f"s_add_u32 s33, s33, s{IDX}")
    a("s_lshl_b32 s33, s33, 7")
    a("v_lshlrev_b32 v4, 4, v1             ; lane*16")
    a("s_cmp_ge_u32 s20, 4")
    a("s_cbranch_scc1 GP_KV")
    XR, XV, HP = 8, 40, 112
    a("s_lshl_b32 s28, s20, 2")
    a("s_add_u32 s36, s35, s28")
    a("s_lshl_b32 s37, s36, 11")
    a("s_add_u32 s38, s37, 4096")
    for k in range(8):
        a(f"buffer_load_dwordx4 {vr(XR+4*k,4)}, v4, s[8:11], s{37 + k//4} offen offset:{(k%4)*1024}{NTX}")
    srd(a, 16, P['gw'], SZ['gw'])
    srd(a, 44, P['b1'], SZ['b1'])
    a("s_lshr_b32 s27, s20, 1             ; wr")
    a("s_mul_i32 s29, s22, 14")
    a("s_lshl_b32 s30, s27, 3")
    a("s_add_u32 s30, s30, s29")
    a("s_add_u32 s31, s29, 6")
    a("s_add_u32 s31, s31, s27")
    a("s_lshl_b32 s57, s30, 5")
    a("s_lshl_b32 s58, s31, 5")
    a("v_lshlrev_b32 v153, 3, v3")
    a("s_lshl_b32 s28, s27, 5")
    a("v_xor_b32 v144, s28, v4")
    a("s_lshl_b32 s29, s20, 13")
    a(f"s_add_u32 s29, s29, {LH}")
    a("v_add_u32 v144, s29, v144")
    for i in range(1, 4): a(f"v_xor_b32 v{144+i}, {64*i}, v144")
    a("v_lshrrev_b32 v5, 2, v2             ; r")
    a("v_and_b32 v6, 1, v3")
    a("v_lshrrev_b32 v7, 1, v3")
    a("v_lshl_add_u32 v148, v6, 3, v5")
    a("v_lshlrev_b32 v148, 11, v148")
    a("v_lshl_add_u32 v148, v5, 6, v148")
    a("v_xor_b32 v149, v6, v7")
    a("v_lshl_add_u32 v148, v149, 5, v148")
    a("v_and_b32 v149, 3, v1")
    a("v_lshl_add_u32 v148, v149, 3, v148")
    a("s_lshl_b32 s28, s20, 9")
    a(f"s_add_u32 s28, s28, {LH}")
    a("v_add_u32 v148, s28, v148")
    for p in range(1, 4): a(f"v_xor_b32 v{148+p}, {p*64}, v148")
    a("v_lshlrev_b32 v152, 10, v7")
    a("v_lshl_add_u32 v152, v6, 8, v152")
    a("v_lshl_add_u32 v152, v2, 4, v152")
    a("s_lshl_b32 s40, s20, 20")
    a("s_lshr_b32 s29, s35, 5")
    a("s_lshl_b32 s29, s29, 13")
    a("s_add_u32 s40, s40, s29")
    a("s_and_b32 s29, s35, 31")
    a("s_lshl_b32 s29, s29, 5")
    a("s_add_u32 s40, s40, s29")
    a(f"s_add_u32 s40, s40, {WS_HT}")
    a("s_add_u32 s41, s40, 4096")
    a("s_add_u32 s42, s40, 524288")
    a("s_add_u32 s43, s42, 4096")
    a("s_lshl_b32 s39, s36, 2")
    a(f"s_add_u32 s39, s39, {WS_G}")
    a("v_lshlrev_b32 v154, 2, v1")
    A0 = 104
    for r in range(4):
        a(f"s_waitcnt vmcnt({6-2*r})")
        if r == 0: stamp(a, 1)
        X = XV + 16*r
        for i in range(8):
            a(f"v_lshlrev_b32 v{X+2*i}, 16, v{XR+8*r+i}")
            a(f"v_and_b32 v{X+2*i+1}, 0xffff0000, v{XR+8*r+i}")
    for r in range(4): a(f"v_pk_add_f32 {vr(A0+2*r,2)}, {vr(XV+16*r,2)}, {vr(XV+16*r+2,2)}")
    for i in range(4, 16, 2):
        for r in range(4): a(f"v_pk_add_f32 {vr(A0+2*r,2)}, {vr(A0+2*r,2)}, {vr(XV+16*r+i,2)}")
    for r in range(4): a(f"v_add_f32 v{A0+2*r}, v{A0+2*r}, v{A0+2*r+1}")
    wave_reduce(a, [A0+2*r for r in range(4)])
    a("s_nop 0")
    for r in range(4): a(f"v_readlane_b32 s{28+r}, v{A0+2*r}, 63")
    a(f"v_mov_b32 v5, {fhex(-1.0/1024)}")
    a("s_nop 0")
    for r in range(4): a(f"v_mul_f32 v{A0+2*r}, s{28+r}, v5")
    for r in range(4): a(f"v_mov_b32 v{A0+2*r+1}, v{A0+2*r}")
    for i in range(0, 16, 2):
        for r in range(4): a(f"v_pk_add_f32 {vr(XV+16*r+i,2)}, {vr(XV+16*r+i,2)}, {vr(A0+2*r,2)}")
    for r in range(4): a(f"v_pk_mul_f32 {vr(A0+2*r,2)}, {vr(XV+16*r,2)}, {vr(XV+16*r,2)}")
    for i in range(2, 16, 2):
        for r in range(4): a(f"v_pk_fma_f32 {vr(A0+2*r,2)}, {vr(XV+16*r+i,2)}, {vr(XV+16*r+i,2)}, {vr(A0+2*r,2)}")
    for r in range(4): a(f"v_add_f32 v{A0+2*r}, v{A0+2*r}, v{A0+2*r+1}")
    wave_reduce(a, [A0+2*r for r in range(4)])
    a("s_nop 0")
    for r in range(4): a(f"v_readlane_b32 s{28+r}, v{A0+2*r}, 63")
    a(f"v_mov_b32 v5, {fhex(1.0/1024)}")
    a(f"v_mov_b32 v6, {fhex(1e-5)}")
    for r in range(4): a(f"v_fma_f32 v{A0+2*r}, s{28+r}, v5, v6")
    for r in range(4): a(f"v_rsq_f32 v{A0+2*r}, v{A0+2*r}")
    for r in range(4): a(f"v_mov_b32 v{A0+2*r+1}, v{A0+2*r}")
    for r in range(4):
        for i in range(0, 16, 2): a(f"v_pk_mul_f32 {vr(XV+16*r+i,2)}, {vr(XV+16*r+i,2)}, {vr(A0+2*r,2)}")
        for i in range(8): a(f"v_cvt_pk_bf16_f32 v{HP+8*r+i}, v{XV+16*r+2*i}, v{XV+16*r+2*i+1}")
        a(f"ds_write_b128 v{144+r}, {vr(HP+8*r,4)} offset:{r*2048}")
        a(f"ds_write_b128 v{144+r}, {vr(HP+8*r+4,4)} offset:{r*2048+1024}")
    a("s_waitcnt lgkmcnt(0)")
    tag_finish(a)
    stamp(a, 2)
    a("s_barrier")
    stamp(a, 20)
    for k in range(8):
        a(f"ds_read_b64_tr_b16 {vr(HP+4*k,2)}, v{148+k%4} offset:{(k//4)*256}")
        a(f"ds_read_b64_tr_b16 {vr(HP+2+4*k,2)}, v{148+k%4} offset:{(k//4)*256 + 4*2048}")
    GW = 156
    a(f"buffer_load_dwordx4 {vr(GW,4)}, v4, s[16:19], 0 offen")
    a(f"buffer_load_dwordx4 {vr(GW+4,4)}, v4, s[16:19], 0 offen offset:1024")
    for k in range(8):
        a(f"s_waitcnt lgkmcnt({14-2*k})")
        a(f"buffer_store_dwordx4 {vr(HP+4*k,4)}, v152, s[12:15], s{40 + k//2} offen offset:{(k%2)*2048}{SC}")
    for i in range(6):
        a(f"buffer_load_dwordx2 {vr(BIAS+2*i,2)}, v153, s[44:47], s57 offen offset:{i*32}")
    a(f"buffer_load_dwordx2 {vr(BIAS+12,2)}, v153, s[44:47], s58 offen")
    stamp(a, 21)
    a("s_waitcnt vmcnt(0)")
    stamp(a, 3)
    a("s_barrier")
    stamp(a, 22)
    a("s_cmp_eq_u32 s20, 0")
    a("s_cbranch_scc0 GP_NR")
    PR, PK = 40, 112
    a(f"v_add_u32 v5, {LX}, v4")
    for w in range(4):
        for q in range(4):
            a(f"ds_read_b128 {vr(PR + w*16 + q*4, 4)}, v5 offset:{w*16384 + q*1024}")
    a("s_lshr_b32 s28, s34, 5              ; kt")
    a("s_lshl_b32 s29, s28, 12")
    a("s_lshl_b32 s30, s26, 11")
    a("s_add_u32 s29, s29, s30")
    a(f"s_add_u32 s29, s29, {WS_KV}")
    a("s_waitcnt lgkmcnt(0)")
    for st in (1, 2):
        for w in range(0, 4, 2 * st):
            for j in range(0, 16, 2):
                a(f"v_pk_add_f32 {vr(PR+w*16+j,2)}, {vr(PR+w*16+j,2)}, {vr(PR+(w+st)*16+j,2)}")
    for j in range(8): a(f"v_cvt_pk_bf16_f32 v{PK+j}, v{PR+2*j}, v{PR+2*j+1}")
    a(f"buffer_store_dwordx4 {vr(PK,4)}, v4, s[12:15], s29 offen{SC}")
    a(f"buffer_store_dwordx4 {vr(PK+4,4)}, v4, s[12:15], s29 offen offset:1024{SC}")
    a("s_cmp_eq_u32 s26, 1")
    a("s_cbranch_scc1 GP_NK")
    a("v_mov_b32 v6, 0")
    for j in range(8): a(f"v_dot2_f32_bf16 v6, v{PK+j}, v{PK+j}, v6")
    a("s_nop 2")
    a("v_mov_b32 v7, v6")
    a("s_nop 1")
    a("v_permlane32_swap_b32 v6, v7")
    a("v_add_f32 v6, v6, v7")
    wave_reduce(a, [6], op="v_max_f32")
    a("s_nop 0")
    a("v_readlane_b32 s30, v6, 63")
    a("s_lshl_b32 s28, s28, 7")
    a(f"s_add_u32 s28, s28, {WS_KN}")
    a("v_mov_b32 v6, s30")
    a("s_mov_b32 exec_hi, 0")
    a(f"buffer_store_dword v6, v154, s[12:15], s28 offen{SC}")
    a("s_mov_b32 exec_hi, -1")
    a.label("GP_NK")
    a("s_barrier")
    a(f"s_add_u32 s28, s33, {FL_F1B}")
    a("s_waitcnt vmcnt(0)")
    flag_store(a, 6, 7, "s28")
    stamp(a, 23)
    a("s_branch GP_G")
    a.label("GP_NR")
    a("s_barrier")
    a.label("GP_G")
    GV = XV
    for i in range(8):
        a(f"v_lshlrev_b32 v{GV+2*i}, 16, v{GW+i}")
        a(f"v_and_b32 v{GV+2*i+1}, 0xffff0000, v{GW+i}")
    for r in range(4):
        T = GV + 16 + 16*(r % 2)
        for i in range(8):
            a(f"v_lshlrev_b32 v{T+2*i}, 16, v{XR+8*r+i}")
            a(f"v_and_b32 v{T+2*i+1}, 0xffff0000, v{XR+8*r+i}")
        a(f"v_pk_mul_f32 {vr(A0+2*r,2)}, {vr(T,2)}, {vr(GV,2)}")
        for i in range(2, 16, 2): a(f"v_pk_fma_f32 {vr(A0+2*r,2)}, {vr(T+i,2)}, {vr(GV+i,2)}, {vr(A0+2*r,2)}")
    for r in range(4): a(f"v_add_f32 v{A0+2*r}, v{A0+2*r}, v{A0+2*r+1}")
    wave_reduce(a, [A0+2*r for r in range(4)])
    a("s_nop 0")
    for r in range(4): a(f"v_readlane_b32 s{28+r}, v{A0+2*r}, 63")
    a("v_mov_b32 v5, 0")
    a("s_nop 0")
    for r in range(4): a(f"v_writelane_b32 v5, s{28+r}, {r}")
    a(f"v_mul_f32 v5, {fhex(-LOG2E)}, v5")
    a("v_exp_f32 v5, v5")
    a("s_nop 0")
    a("v_add_f32 v5, 1.0, v5")
    a("v_rcp_f32 v5, v5")
    a("s_mov_b64 exec, 15")
    a(f"buffer_store_dword v5, v154, s[12:15], s39 offen{SC}")
    a("s_mov_b64 exec, -1")
    a("s_branch GP_DONE")
    a.label("GP_KV")
    a("s_cmp_eq_u32 s26, 1")
    a(f"s_cselect_b32 s44, s{P['wv']}, s{P['wk']}")
    a(f"s_cselect_b32 s45, s{P['wv']+1}, s{P['wk']+1}")
    a("s_and_b32 s45, s45, 0xffff")
    a(f"s_mov_b32 s46, 0x{SZ['wk']:x}")
    a("s_mov_b32 s47, 0x20000")
    a("s_and_b32 s52, s20, 3               ; kw")
    a(f"s_lshr_b32 s28, s{IDX}, 1")
    a("s_lshl_b32 s28, s28, 2")
    a("s_add_u32 s28, s28, s52")
    a("s_lshl_b32 s28, s28, 11")
    a("v_lshlrev_b32 v5, 7, v1")
    srd(a, 16, P['gw'], SZ['gw'])
    srd(a, 48, P['b1'], SZ['b1'])
    a("s_lshl_b32 s29, s52, 9")
    a("s_mul_i32 s30, s22, 448")
    a("s_lshl_b32 s31, s52, 7")
    a("s_add_u32 s30, s30, s31")
    a("s_mov_b64 exec, 0xffff")
    a("buffer_load_dword v254, v5, s[44:47], s28 offen")
    a("s_mov_b64 exec, 15")
    a("buffer_load_dword v254, v5, s[16:19], s29 offen")
    a("s_mov_b64 exec, 1")
    a("buffer_load_dword v254, v5, s[48:51], s30 offen")
    a("s_mov_b64 exec, -1")
    srd(a, 48, P['w1'], SZ['w1'])
    mlp1_loader_setup(a)
    XF, WF, AC, XD = 96, 32, 64, 128
    a("s_lshl_b32 s39, s52, 14             ; kw*16384")
    a("s_lshl_b32 s38, s52, 9")
    a("v_add_u32 v5, s34, v3")
    a("v_lshlrev_b32 v5, 11, v5")
    a("v_add_u32 v5, s38, v5")
    a("v_xor_b32 v6, v2, v3")
    for i in range(8):
        a(f"v_xor_b32 v7, {(4*i) & 15}, v6")
        a(f"v_lshl_add_u32 v{XD+i}, v7, 4, v5")
        a(f"v_add_u32 v{XD+i}, {i*4*2048 - (i%4)*1024}, v{XD+i}")
    a("v_and_b32 v5, 31, v1")
    a("v_lshrrev_b32 v6, 5, v1")
    a("v_xor_b32 v6, v6, v2")
    a("v_lshlrev_b32 v5, 8, v5")
    a("v_lshl_add_u32 v5, v6, 4, v5")
    a(f"s_add_u32 s31, s39, {LX}")
    a("v_add_u32 v5, s31, v5")
    for t in range(8): a(f"v_xor_b32 v{XD+8+t}, {t*32}, v5")
    a("v_lshrrev_b32 v5, 2, v2")
    a("v_lshrrev_b32 v7, 1, v3")
    a("v_lshl_add_u32 v150, v7, 3, v5")
    a("v_lshlrev_b32 v150, 6, v150")
    a("v_and_b32 v6, 1, v3")
    a("v_lshl_add_u32 v150, v6, 5, v150")
    a("v_and_b32 v6, 3, v1")
    a("v_lshl_add_u32 v150, v6, 3, v150")
    a("v_add_u32 v150, s39, v150")
    a("v_add_u32 v151, s31, v4")
    a("s_movk_i32 s41, 256")
    a("s_mov_b32 s40, s39")
    a(f"s_mov_b32 s42, {256*7168}")
    a("s_waitcnt vmcnt(0) lgkmcnt(0)")
    tag_finish(a)
    stamp(a, 1)
    for h in range(4):
        a(f"s_add_u32 m0, s40, {LW}")
        a("s_nop 0")
        for i in range(4): a(f"buffer_load_dwordx4 v4, s[44:47], s40 offen offset:{i*1024} lds")
        a("s_add_u32 s40, s40, 4096")
    for h in range(4):
        a(f"s_add_u32 m0, s31, {h*4096}")
        a("s_nop 0")
        for i in range(4): a(f"buffer_load_dwordx4 v{XD+4*(h%2)+i}, s[8:11], {'0' if h < 2 else 's41'} offen offset:{i*1024} lds")
    stamp(a, 2)
    a("s_barrier")
    a("s_waitcnt vmcnt(0)")
    stamp(a, 21)
    for h in range(2):
        for t in range(8):
            a(f"ds_read_b128 {vr(XF+4*t,4)}, v{XD+8+t} offset:{h*8192}")
            a(f"ds_read_b64_tr_b16 {vr(WF+4*t,2)}, v150 offset:{h*8192 + t*1024}")
            a(f"ds_read_b64_tr_b16 {vr(WF+4*t+2,2)}, v150 offset:{h*8192 + t*1024+256}")
        a("s_cmp_eq_u32 s26, 1")
        a("s_waitcnt lgkmcnt(0)")
        a(f"s_cbranch_scc1 GP_V{h}")
        for t in range(8):
            a(f"{M32} {vr(AC,16)}, {vr(WF+4*t,4)}, {vr(XF+4*t,4)}, {'0' if t + h == 0 else vr(AC,16)}")
        a(f"s_branch GP_J{h}")
        a.label(f"GP_V{h}")
        for t in range(8):
            a(f"{M32} {vr(AC,16)}, {vr(XF+4*t,4)}, {vr(WF+4*t,4)}, {'0' if t + h == 0 else vr(AC,16)}")
        a.label(f"GP_J{h}")
    a("s_nop 11")
    for q in range(4): a(f"ds_write_b128 v151, {vr(AC+4*q,4)} offset:{q*1024}")
    a("s_waitcnt lgkmcnt(0)")
    stamp(a, 3)
    a("s_barrier")
    stamp(a, 22)
    a("s_cmp_eq_u32 s20, 4")
    a("s_cbranch_scc0 GP_NF")
    a(f"s_add_u32 s28, s33, {FL_F1}")
    flag_store(a, 6, 7, "s28")
    a.label("GP_NF")
    a("s_barrier")
    a(f"buffer_load_dword v254, v{L1F+1}, s[48:51], 0 offen")
    a(f"buffer_load_dword v254, v{L1F+1}, s[48:51], s42 offen")
    a.label("GP_DONE")

M1_SLOT, M1_R, M1_NS, M1_ACC = 49152, 3, 32, 128
M1_SET = [(16, 44), (60, 88)]
def m1_acc(i, j): return M1_ACC + (i * 4 + j) * 4

def mlp1_loader_setup(a):
    a("s_and_b32 s52, s20, 3              ; lw")
    a("v_lshrrev_b32 v5, 3, v1            ; l/8")
    a("v_and_b32 v6, 7, v1                ; l%8")
    a("v_and_b32 v7, 2, v5")
    a("v_xor_b32 v6, v6, v7")
    a("s_movk_i32 s28, 7168")
    a("v_mul_lo_u32 v5, v5, s28")
    a("s_mul_i32 s28, s22, 448")
    a("s_and_b32 s29, s22, 1")
    a("s_lshl_b32 s29, s29, 6")
    a("s_sub_u32 s28, s28, s29")
    a("s_lshl_b32 s29, s52, 7")
    a("s_add_u32 s28, s28, s29")
    a("v_add_u32 v5, s28, v5")
    a("v_lshl_add_u32 v7, v6, 4, v5       ; even i")
    a("v_xor_b32 v6, 4, v6")
    a("v_lshl_add_u32 v6, v6, 4, v5       ; odd i")
    for i in range(8):
        a(f"v_add_u32 v{L1T+i}, {i*8*7168 - (i%4)*1024}, v{7 if i%2==0 else 6}")
    a("s_lshl_b32 s28, s21, 19")
    a("s_lshl_b32 s29, s52, 12")
    a("s_add_u32 s28, s28, s29")
    a(f"s_add_u32 s28, s28, {WS_HT}")
    a(f"v_lshl_add_u32 v{L1F}, v1, 4, s28")
    a(f"s_lshl_b32 s28, s{IDX}, 2")
    a("s_add_u32 s28, s28, s52")
    a("s_lshl_b32 s28, s28, 2")
    a("v_add_u32 v5, s28, v3")
    a("s_movk_i32 s28, 7168")
    a("v_mul_lo_u32 v5, v5, s28")
    a("v_min_u32 v6, 13, v2")
    a("v_lshl_add_u32 v5, v6, 7, v5")
    a(f"s_lshr_b32 s28, s{XCD}, 1")
    a("s_mul_i32 s28, s28, 1792")
    a(f"v_add_u32 v{L1F+1}, s28, v5")
    a("s_lshl_b32 s54, s52, 13")
    a("s_add_u32 s55, s29, 32768")

def mlp1_loader(a):
    n = 12
    a("s_mov_b32 s24, 0")
    a("s_mov_b32 s25, 0")
    a("s_mov_b32 s26, 0")
    a("s_mov_b32 m0, s54")
    a("s_add_u32 s56, s54, 4096")
    def issueT():
        for i in range(4): a(f"buffer_load_dwordx4 v{L1T+i}, s[48:51], s25 offen offset:{i*1024}{NTW} lds")
        a("s_add_u32 m0, s24, s56")
        a("s_nop 0")
        for i in range(4, 8): a(f"buffer_load_dwordx4 v{L1T+i}, s[48:51], s25 offen offset:{(i%4)*1024}{NTW} lds")
        a("s_add_u32 m0, s24, s55")
        a(f"s_add_u32 s25, s25, {64*7168}")
    def issueF():
        adv = slot_advance(24, M1_SLOT, M1_R)
        for i in range(4):
            a(f"buffer_load_dwordx4 v{L1F}, s[12:15], s26 offen offset:{i*1024}{SC} lds")
            if i < 3: a(adv[i])
        a("s_add_u32 s26, s26, 16384")
        a("s_add_u32 m0, s24, s54")
    issueT()
    a("s_barrier")
    stamp(a, 4)
    issueF()
    a("s_nop 0")
    issueT(); issueF()
    a(f"s_waitcnt vmcnt({n})")
    a("s_barrier")
    a("s_cmp_eq_u32 s20, 4")
    a("s_cbranch_scc0 M1_NGF")
    a(f"s_add_u32 s28, s33, {FL_F1C}")
    flag_store(a, 16, 17, "s28")
    a.label("M1_NGF")
    issueT(); issueF()
    a(f"s_waitcnt vmcnt({n})")
    a("s_barrier")
    issueT(); issueF()
    UN = 4
    a(f"s_mov_b32 s23, {(M1_NS - M1_R - 1) // UN}")
    a(".p2align 6")
    a.label("M1_LDL")
    for u in range(UN):
        a(f"s_waitcnt vmcnt({(M1_R-2)*n})")
        a("s_barrier")
        issueT(); issueF()
    if PROF["on"]:
        a("s_memtime s[94:95]")
        a("s_memrealtime s[96:97]")
        a("s_lshl_b32 s60, s23, 1")
        a("s_add_u32 s60, s60, 46")
        a("s_add_u32 s61, s60, 1")
        a("s_waitcnt lgkmcnt(0)")
        a("v_writelane_b32 v255, s94, s60" if False else "s_mov_b32 s62, m0")
        a("s_mov_b32 m0, s60")
        a("v_writelane_b32 v255, s94, m0")
        a("s_mov_b32 m0, s61")
        a("v_writelane_b32 v255, s96, m0")
        a("s_mov_b32 m0, s62")
    a("s_sub_u32 s23, s23, 1")
    a("s_cmp_lg_u32 s23, 0")
    a("s_cbranch_scc1 M1_LDL")
    for i in range(M1_NS - M1_R, M1_NS - 1):
        left = (M1_NS - 1) - (i + 1)
        a(f"s_waitcnt vmcnt({left*n})")
        a("s_barrier")
    a("s_barrier")

def mlp1_compute(a):
    a("s_lshr_b32 s27, s20, 1             ; wr")
    a("s_and_b32 s28, s20, 1              ; wc")
    a("s_mul_i32 s29, s22, 14")
    a("s_lshl_b32 s30, s27, 3")
    a("s_add_u32 s30, s30, s29")
    a("s_add_u32 s31, s29, 6")
    a("s_add_u32 s31, s31, s27")
    a("v_lshrrev_b32 v5, 2, v2            ; r")
    a("v_lshl_add_u32 v6, v3, 3, v5       ; 8g+r")
    a("v_lshlrev_b32 v6, 7, v6")
    a("v_and_b32 v7, 3, v1")
    a("v_lshl_add_u32 v6, v7, 3, v6       ; + c*8")
    a("v_lshrrev_b32 v5, 1, v5")
    a("v_and_b32 v7, 1, v3")
    a("v_lshl_add_u32 v5, v7, 1, v5       ; f")
    a("v_lshl_add_u32 v6, v5, 5, v6")
    a("s_and_b32 s34, s22, 1")
    a("s_lshl_b32 s34, s34, 1")
    a("s_lshl_b32 s35, s27, 3")
    a("s_add_u32 s35, s35, s34            ; jj0")
    a("s_add_u32 s36, s34, 6")
    a("s_add_u32 s36, s36, s27            ; jj6")
    for i in range(5):
        if i < 4: a(f"s_add_u32 s37, s35, {i}")
        else: a("s_mov_b32 s37, s36")
        a("s_and_b32 s38, s37, 3")
        a("s_lshl_b32 s38, s38, 5")
        a("s_lshr_b32 s37, s37, 2")
        a("s_lshl_b32 s37, s37, 13")
        a(f"v_xor_b32 v{10+i}, s38, v6")
        a(f"v_add_u32 v{10+i}, s37, v{10+i}")
    a("s_lshl_b32 s37, s28, 12")
    a("s_add_u32 s37, s37, 32768")
    a("v_lshl_add_u32 v15, v1, 4, s37")
    for i in range(7):
        b = m1_acc(i, 0)
        a(f"v_lshlrev_b32 v{b}, 16, v{BIAS+2*i}")
        a(f"v_and_b32 v{b+1}, 0xffff0000, v{BIAS+2*i}")
        a(f"v_lshlrev_b32 v{b+2}, 16, v{BIAS+1+2*i}")
        a(f"v_and_b32 v{b+3}, 0xffff0000, v{BIAS+1+2*i}")
        for j in range(1, 4):
            for r in range(4): a(f"v_mov_b32 v{m1_acc(i,j)+r}, v{b+r}")
    for i in range(6): a(f"v_mov_b32 v{4+i}, v{10+i}")
    a("s_mov_b32 s24, 0")
    def reads(st, t):
        A, B = M1_SET[st]
        o = []
        for j in range(4):
            o.append(f"ds_read_b128 {vr(B+4*j,4)}, v9 offset:{t*8192 + j*1024}")
        for i in range(7):
            reg = 4 + (i % 4) if i < 6 else 8
            off = (8192 if i in (4, 5) else 0) + t * 4096
            o.append(f"ds_read_b64_tr_b16 {vr(A+4*i,2)}, v{reg} offset:{off}")
            o.append(f"ds_read_b64_tr_b16 {vr(A+4*i+2,2)}, v{reg} offset:{off+512}")
        return o
    def mfmas(st):
        A, B = M1_SET[st]
        return [f"{M16} {vr(m1_acc(i,j),4)}, {vr(A+4*i,4)}, {vr(B+4*j,4)}, {vr(m1_acc(i,j),4)}"
                for i in range(7) for j in range(4)]
    upd = slot_advance(24, M1_SLOT, M1_R) + [f"v_add_u32 v{4+i}, s24, v{10+i}" for i in range(6)]
    def stage(last=False):
        for x in interleave(mfmas(0), reads(1, 1) + ([] if last else upd), 0, 27 if not last else 20): a(x)
        a("s_waitcnt lgkmcnt(0)")
        a("s_barrier")
        seq = interleave(mfmas(1), reads(0, 0), 0, 20) if not last else mfmas(1)
        for x in seq: a(x)
        if not last: a("s_waitcnt lgkmcnt(0)")
    a("s_cmp_eq_u32 s20, 1")
    a("s_cbranch_scc0 M1_NP")
    a(f"s_mov_b32 s60, {FL_F1}")
    a(f"s_mov_b32 s61, {FL_F1 + 8192}")
    a("v_lshlrev_b32 v16, 7, v1")
    poll(a, [(16, "s60", 0), (16, "s61", 0)], 17, "M1P", sleep=4)
    a.label("M1_NP")
    stamp(a, 24)
    a("s_barrier")
    a("s_waitcnt vmcnt(0)")
    stamp(a, 4)
    a("s_barrier")
    stamp(a, 5)
    for x in reads(0, 0): a(x)
    a(f"s_mov_b32 s23, {(M1_NS-2)//2}")
    a("s_waitcnt lgkmcnt(0)")
    a(".p2align 6")
    a.label("M1_CL")
    stage(); stage()
    a("s_sub_u32 s23, s23, 1")
    a("s_cmp_lg_u32 s23, 0")
    a("s_cbranch_scc1 M1_CL")
    stage(); stage(last=True)

def mlp1_epilogue(a):
    c1 = -2.0 * 0.7978845608028654 * LOG2E
    c2 = c1 * 0.044715
    a(f"v_mov_b32 v4, {fhex(c1)}")
    a(f"v_mov_b32 v5, {fhex(c1)}")
    a(f"v_mov_b32 v6, {fhex(c2)}")
    a(f"v_mov_b32 v7, {fhex(c2)}")
    a(f"s_mul_i32 s32, s21, {112*8192}")
    a("s_lshl_b32 s33, s28, 12")
    a("s_add_u32 s32, s32, s33")
    a(f"s_add_u32 s32, s32, {WS_U}")
    a("s_lshr_b32 s33, s30, 1")
    a("s_lshl_b32 s33, s33, 13")
    a("s_add_u32 s33, s33, s32")
    a("s_lshr_b32 s34, s31, 1")
    a("s_lshl_b32 s34, s34, 13")
    a("s_add_u32 s34, s34, s32")
    a("s_lshl_b32 s35, s27, 9")
    a("s_add_u32 s34, s34, s35")
    a("v_lshlrev_b32 v8, 4, v1")
    a("v_lshrrev_b32 v11, 1, v3")
    a("v_lshlrev_b32 v11, 8, v11")
    a("v_lshl_add_u32 v11, v2, 4, v11")
    a("v_and_b32 v12, 1, v3")
    a("v_lshl_add_u32 v11, v12, 3, v11    ; (16(g>>1) + c)*16 + (g&1)*8")
    a("s_lshl_b32 s35, s22, 2")
    a("s_add_u32 s35, s35, s20")
    a("s_lshl_b32 s35, s35, 7")
    a("s_lshl_b32 s36, s21, 13")
    a("s_add_u32 s35, s35, s36")
    a(f"s_add_u32 s35, s35, {FL_F2}")
    a("s_add_u32 s36, s35, 65536")
    a("v_mov_b32 v9, 0")
    T = 16
    def gelu_block(accs, tb, ob):
        n = len(accs)
        pr = [(accs[q] + 2 * h, tb + 4 * q + 2 * h) for q in range(n) for h in range(2)]
        for u, t in pr: a(f"v_pk_mul_f32 {vr(t,2)}, {vr(u,2)}, {vr(u,2)}")
        for u, t in pr: a(f"v_pk_fma_f32 {vr(t,2)}, {vr(t,2)}, v[6:7], v[4:5]")
        for u, t in pr: a(f"v_pk_mul_f32 {vr(t,2)}, {vr(t,2)}, {vr(u,2)}")
        for u, t in pr:
            a(f"v_exp_f32 v{t}, v{t}"); a(f"v_exp_f32 v{t+1}, v{t+1}")
        for u, t in pr: a(f"v_pk_add_f32 {vr(t,2)}, {vr(t,2)}, 1.0 op_sel_hi:[1,0]")
        for u, t in pr:
            a(f"v_rcp_f32 v{t}, v{t}"); a(f"v_rcp_f32 v{t+1}, v{t+1}")
        for u, t in pr: a(f"v_pk_mul_f32 {vr(t,2)}, {vr(t,2)}, {vr(u,2)}")
        for k, (u, t) in enumerate(pr): a(f"v_cvt_pk_bf16_f32 v{ob+k}, v{t}, v{t+1}")
    blk = 0
    for p in range(3):
        for j in range(0, 4, 2):
            ob = 48 + (blk % 4) * 8
            gelu_block([m1_acc(2*p, j), m1_acc(2*p+1, j), m1_acc(2*p, j+1), m1_acc(2*p+1, j+1)], T, ob)
            if blk == env("F2_AT", 3):
                a(f"s_waitcnt vmcnt({2*(blk-2)})")
                flag_store(a, 9, 10, "s35", "1")
            a(f"buffer_store_dwordx4 {vr(ob,4)}, v8, s[12:15], s33 offen offset:{j*1024}{SC}")
            a(f"buffer_store_dwordx4 {vr(ob+4,4)}, v8, s[12:15], s33 offen offset:{(j+1)*1024}{SC}")
            blk += 1
        a("s_add_u32 s33, s33, 8192")
    ob = 48 + (blk % 4) * 8
    gelu_block([m1_acc(6, j) for j in range(4)], T, ob)
    for j in range(4):
        a(f"buffer_store_dwordx2 {vr(ob+2*j,2)}, v11, s[12:15], s34 offen offset:{j*1024}{SC}")

M2_SLOT = 32768
G2 = {
    0: dict(NS=16, R=4, slot0=0, sets=[(176, 192), (208, 224)], acc=[80 + 4*k for k in range(8)] + [144 + 4*k for k in range(8)]),
    1: dict(NS=56, R=env("M2_R", 4), slot0=0, sets=[(16, 32), (48, 64)], acc=[128 + 4*k for k in range(16)]),
    2: dict(NS=16, R=5, slot0=2, sets=[(16, 32), (48, 64)], acc=[128 + 4*k for k in range(16)]),
}
def g2acc(part, i, j): return G2[part]["acc"][i * 4 + j]

def t_offsets(a, dst, sh, colreg, natural):
    a("v_lshrrev_b32 v4, 3, v1            ; l/8")
    a("v_and_b32 v5, 7, v1")
    a(f"v_and_b32 v6, {2 if natural else 6}, v4")
    a("v_xor_b32 v5, v5, v6")
    a("s_lshl_b32 s60, s29, 7")
    a(f"s_lshl_b32 s61, s{colreg}, 8")
    a("s_add_u32 s60, s60, s61")
    a(f"v_lshlrev_b32 v4, {sh}, v4")
    a("v_add_u32 v4, s60, v4")
    a("v_lshl_add_u32 v6, v5, 4, v4")
    if natural:
        a("v_xor_b32 v5, 4, v5")
        a("v_lshl_add_u32 v5, v5, 4, v4")
    for i in range(4): a(f"v_add_u32 v{dst+i}, {i*((8 << sh)-1024)}, v{5 if (natural and i & 1) else 6}")

def loader_ids(a):
    a("s_and_b32 s27, s20, 3              ; lw")
    a("s_lshr_b32 s28, s27, 1")
    a("s_and_b32 s29, s27, 1              ; cb")

class Gate:
    def __init__(self, a, pfx): self.a, self.pfx, self.tail, self.n = a, pfx, [], 0
    def check(self):
        a = self.a; self.n += 1
        L = f"{self.pfx}G{self.n}"
        a("s_andn2_b64 s[42:43], s[38:39], s[40:41]")
        a(f"s_cbranch_scc1 {L}_P")
        a.label(f"{L}_D")
        self.tail.append(("poll", L))
    def refresh_issue(self):
        a = self.a; self.n += 1
        L = f"{self.pfx}R{self.n}"
        a("s_andn2_b64 s[52:53], s[44:45], s[40:41]")
        a(f"s_cbranch_scc1 {L}_P")
        a.label(f"{L}_D")
        self.tail.append(("ri", L))
    def refresh_take(self):
        a = self.a; self.n += 1
        L = f"{self.pfx}R{self.n}"
        a("s_cmp_lg_u64 s[52:53], 0")
        a(f"s_cbranch_scc1 {L}_P")
        a.label(f"{L}_D")
        self.tail.append(("rt", L))
    def emit(self):
        a = self.a
        a(f"s_branch {self.pfx}_GEND")
        for kind, L in self.tail:
            a.label(f"{L}_P")
            if kind == "poll":
                a("s_mov_b32 s99, 0x40000")
                a.label(f"{L}_C")
                a("s_andn2_b64 exec, s[44:45], s[40:41]")
                a("buffer_load_dword v17, v16, s[12:15], s34 offen sc1")
                a("s_waitcnt vmcnt(0)")
                a(f"v_cmp_eq_u32 vcc, s{TAG}, v17")
                a("s_mov_b64 exec, -1")
                a("s_or_b64 s[40:41], s[40:41], vcc")
                a("s_andn2_b64 s[42:43], s[38:39], s[40:41]")
                a(f"s_cbranch_scc0 {L}_D")
                a(f"s_sleep {env('POLL_SLEEP', 3)}")
                a("s_sub_u32 s99, s99, 1")
                a("s_cmp_lg_u32 s99, 0")
                a(f"s_cbranch_scc1 {L}_C")
            elif kind == "sw":
                for i in range(4): a(f"v_mov_b32 v{8+i}, v{20+i}")
            elif kind == "ri":
                a("s_mov_b64 exec, s[52:53]")
                a("buffer_load_dword v18, v16, s[12:15], s34 offen sc1")
                a("s_mov_b64 exec, -1")
            else:
                a("s_mov_b64 exec, s[52:53]")
                a(f"v_cmp_eq_u32 vcc, s{TAG}, v18")
                a("s_mov_b64 exec, -1")
                a("s_or_b64 s[40:41], s[40:41], vcc")
            a(f"s_branch {L}_D")
        a.label(f"{self.pfx}_GEND")

def ring_issue(a, part, sal, more, tmod, fsrd, fregs, fmod, post, mid=None):
    k = 0
    per = (len(sal) + 3) // 4
    for i in range(4):
        a(f"buffer_load_dwordx4 v{8+i}, s[8:11], s25 offen offset:{i*1024}{tmod} lds")
        if i == 3: a("s_mov_b32 m0, s50")
        for x in sal[k:k+per]: a(x)
        if i == 3 and not sal[k:k+per]: a("s_nop 0")
        k += per
    if mid: mid()
    for i in range(4):
        a(f"buffer_load_dwordx4 v{fregs[i]}, s[{fsrd}:{fsrd+3}], s26 offen offset:{i*1024}{fmod} lds")
        if more and i == 0:
            for x in slot_advance(24, M2_SLOT, G2[part]["R"]): a(x)
            a("s_add_u32 s50, s24, s31")
        if more and i == 1: post(0)
    if more: post(1)

def lds_offs(a):
    a("s_lshl_b32 s30, s29, 13")
    a("s_lshl_b32 s31, s28, 12")
    a("s_add_u32 s30, s30, s31")
    a("s_lshl_b32 s31, s27, 12")
    a("s_add_u32 s31, s31, 16384")

def mlp2_loader(a):
    part = 1; NS = 56; R = G2[1]["R"]; n = 8
    srd(a, 8, P['w2'], SZ['w2'])
    loader_ids(a)
    t_offsets(a, 8, 12, 22, False)
    a("v_lshrrev_b32 v4, 5, v1")
    a("v_lshlrev_b32 v4, 14, v4")
    for i in range(4):
        d = (16*(i & 1) + 4*(i >> 1) - 8*i) * 4096
        a(f"v_add_u32 v{20+i}, v4, v{8+i}")
        if d: a(f"v_add_u32 v{20+i}, {d & 0xffffffff}, v{20+i}")
    a("s_lshl_b32 s32, s29, 12")
    a(f"s_mul_i32 s31, s21, {112*8192}")
    a("s_add_u32 s31, s31, s32")
    a(f"s_add_u32 s31, s31, {WS_U}")
    a("v_lshl_add_u32 v7, v1, 4, s31")
    lds_offs(a)
    a("s_mov_b32 s24, 0                   ; slot")
    a("s_mov_b32 s33, 0")
    a("s_lshl_b32 s34, s21, 13")
    a(f"s_add_u32 s34, s34, {FL_F2}")
    a("v_and_b32 v4, 2, v3")
    a("v_xor_b32 v4, s27, v4")
    a("v_lshl_add_u32 v4, v2, 2, v4")
    a("v_lshlrev_b32 v16, 7, v4")
    a("v_min_u32 v4, 1, v3")
    a("v_lshl_add_u32 v16, v4, 16, v16")
    a("v_add_u32 v16, s34, v16")
    a("s_lshl_b32 s34, s22, 10")
    a(f"s_add_u32 s34, s34, {FL_F1C}")
    a("v_lshl_add_u32 v4, v2, 7, s34")
    a("v_cmp_eq_u32 vcc, 3, v3")
    a("s_mov_b32 s34, 0")
    a("s_mov_b32 s44, 0xffff")
    a("v_cndmask_b32 v16, v16, v4, vcc")
    a("s_mov_b32 s45, 0xff0000")
    a("s_mov_b64 s[40:41], 0")
    a("s_mov_b64 s[52:53], 0")
    a("s_lshl_b32 s35, s28, 2             ; 4*half")
    a("s_and_b32 s36, s22, 12")
    a("s_add_u32 s36, s36, 4")
    a(f"s_sleep {env('L1_SLEEP', 40)}")
    g = Gate(a, "L1")
    nxt = ["s_lshl_b32 s47, s33, 1", "s_add_u32 s47, s47, s28", "s_lshr_b32 s48, s33, 4", "s_add_u32 s48, s48, s35",
           "s_cmp_ge_u32 s33, 16", "s_cselect_b32 s38, 0x10000, 1",
           "s_cmp_ge_u32 s33, 48", "s_cselect_b32 s47, s47, s33", "s_cselect_b32 s48, 3, s48", "s_cselect_b32 s39, 1, 0",
           "s_add_u32 s47, s47, s36", "s_and_b32 s47, s47, 15", "s_lshl_b64 s[38:39], s[38:39], s47",
           "s_mul_i32 s47, s47, 7", "s_add_u32 s48, s48, s47"]
    def post(ph):
        if ph == 0:
            a("s_lshl_b32 s25, s48, 17")
            g.n += 1
            a("s_cmp_eq_u32 s33, 48")
            a(f"s_cbranch_scc1 L1W{g.n}_P")
            a.label(f"L1W{g.n}_D")
            g.tail.append(("sw", f"L1W{g.n}"))
            g.check()
        else:
            a("s_add_u32 m0, s24, s30")
            a("s_lshl_b32 s26, s48, 13")
    def issue(more=True):
        ring_issue(a, 1, (["s_add_u32 s33, s33, 1"] + nxt) if more else [], more, " nt" if env("NT_M2", 0) & 1 else "", 12, [7]*4, SC + (" nt" if env("NT_M2", 0) & 2 else ""), post)
    for x in nxt: a(x)
    a("s_mov_b32 s39, 0xff0000")
    a("s_mov_b32 s50, s31")
    post(0); post(1)
    stamp(a, 8)
    R = env("M2_LA", 3)
    issue(); issue()
    a(f"s_waitcnt vmcnt({n})")
    a("s_barrier")
    for _ in range(R - 2): issue()
    UN = 4
    left = NS - R
    pre = (left - 1) % UN
    if pre == 0: pre = UN
    for _ in range(pre):
        a(f"s_waitcnt vmcnt({(R-2)*n})")
        a("s_barrier")
        issue()
    a("s_mov_b32 s44, -1")
    a("s_mov_b32 s45, 0xffff")
    a(f"s_mov_b32 s23, {(left - 1 - pre) // UN}")
    a(".p2align 6")
    a.label("L1_LOOP")
    for u in range(UN):
        a(f"s_waitcnt vmcnt({(R-2)*n})")
        if u == 0: g.refresh_issue()
        if u == UN - 1: g.refresh_take()
        a("s_barrier")
        issue()
    if PROF["on"]:
        a("s_memtime s[94:95]")
        a("s_memrealtime s[96:97]")
        a("s_lshl_b32 s60, s23, 1")
        a("s_add_u32 s60, s60, 22")
        a("s_add_u32 s61, s60, 1")
        a("s_waitcnt lgkmcnt(0)")
        a("s_mov_b32 s62, m0")
        a("s_mov_b32 m0, s60")
        a("v_writelane_b32 v255, s94, m0")
        a("s_mov_b32 m0, s61")
        a("v_writelane_b32 v255, s96, m0")
        a("s_mov_b32 m0, s62")
    a("s_sub_u32 s23, s23, 1")
    a("s_cmp_lg_u32 s23, 0")
    a("s_cbranch_scc1 L1_LOOP")
    a(f"s_waitcnt vmcnt({(R-2)*n})")
    a("s_barrier")
    issue(more=False)
    for i in range(NS - R, NS - 1):
        a(f"s_waitcnt vmcnt({((NS - 1) - (i + 1))*n})")
        a("s_barrier")
    g.emit()

def g2_compute_setup(a, part):
    c = G2[part]
    a("s_lshr_b32 s27, s20, 1             ; wr")
    a("s_and_b32 s28, s20, 1              ; wc")
    if part == 0:
        a("v_lshrrev_b32 v5, 2, v2            ; r")
        a("v_lshl_add_u32 v6, v3, 3, v5       ; 8g+r")
        a("v_lshlrev_b32 v6, 7, v6")
        a("v_lshrrev_b32 v5, 1, v5")
        a("v_and_b32 v7, 1, v3")
        a("v_lshl_add_u32 v5, v7, 1, v5")
    else:
        a("v_lshrrev_b32 v5, 2, v1            ; 4g + r = l/4")
        a("v_lshlrev_b32 v6, 7, v5")
        a("v_lshrrev_b32 v5, 1, v5")
        a("v_and_b32 v5, 3, v5")
    a("v_lshl_add_u32 v6, v5, 5, v6")
    a("v_and_b32 v7, 3, v1")
    a("v_lshl_add_u32 v6, v7, 3, v6")
    tw, fw = (28, 27) if part == 1 else (27, 28)
    a(f"s_lshl_b32 s60, s{tw}, 13")
    for j in range(4):
        a(f"v_xor_b32 v7, {j*32}, v6")
        a(f"v_add_u32 v{10+j}, s60, v7")
    if part == 0:
        a("v_and_b32 v5, 7, v2")
        a("v_xor_b32 v5, v5, v3")
        a("v_lshlrev_b32 v6, 7, v2")
        a("v_lshl_add_u32 v6, v5, 4, v6")
        a("s_lshl_b32 s60, s28, 13")
        a("s_add_u32 s60, s60, 16384")
        a("v_add_u32 v14, s60, v6")
        a("v_xor_b32 v15, 64, v14")
    else:
        a(f"s_lshl_b32 s60, s{fw}, 12")
        a("s_add_u32 s60, s60, 16384")
        a("v_lshl_add_u32 v14, v1, 4, s60")
    a(f"s_mov_b32 s24, {c['slot0']*M2_SLOT}")
    for i in range(6 if part == 0 else 5): a(f"v_add_u32 v{4+i}, s24, v{10+i}")

def g2_compute(a, part, hooks={}):
    c = G2[part]; pfx = f"C{part}"; NS = c["NS"]
    na = 6 if part == 0 else 5
    def reads(st, t):
        Fb, Tb = c["sets"][st]
        o = []
        for j in range(4):
            if part == 0: o.append(f"ds_read_b128 {vr(Fb+4*j,4)}, v{8+t} offset:{j*2048}")
            else: o.append(f"ds_read_b128 {vr(Fb+4*j,4)}, v8 offset:{t*8192 + j*1024}")
            o.append(f"ds_read_b64_tr_b16 {vr(Tb+4*j,2)}, v{4+j} offset:{t*4096}")
            o.append(f"ds_read_b64_tr_b16 {vr(Tb+4*j+2,2)}, v{4+j} offset:{t*4096+(512 if part == 0 else 2048)}")
        return o
    def mfmas(st, first=False):
        Fb, Tb = c["sets"][st]
        A, B = (Fb, Tb) if part == 1 else (Tb, Fb)
        return [f"{M16} {vr(g2acc(part,i,j),4)}, {vr(A+4*i,4)}, {vr(B+4*j,4)}, {'0' if first else vr(g2acc(part,i,j),4)}"
                for i in range(4) for j in range(4)]
    upd = slot_advance(24, M2_SLOT, c["R"]) + [f"v_add_u32 v{4+i}, s24, v{10+i}" for i in range(na)]
    def stage(last=False, first=False):
        seq = interleave(mfmas(0, first), reads(1, 1), 0, 10)
        if not last:
            out = []; k = 0; cnt = 0
            for x in seq:
                out.append(x)
                if x.startswith("v_mfma"):
                    cnt += 1
                    if cnt > 10:
                        for _ in range(2):
                            if k < len(upd): out.append(upd[k]); k += 1
            assert k == len(upd)
            seq = out
        for x in seq: a(x)
        a("s_waitcnt lgkmcnt(0)")
        if not last:
            a("s_barrier")
            seq = interleave(mfmas(1), reads(0, 0), 0, 10)
        else:
            seq = mfmas(1)
        for x in seq: a(x)
        if not last: a("s_waitcnt lgkmcnt(0)")
    for x in reads(0, 0): a(x)
    a("s_waitcnt lgkmcnt(0)")
    stage(first=True)
    if 0 in hooks: hooks[0]()
    k = 1; nl = 0
    stops = sorted([h for h in hooks if h > 0] + [NS - 2])
    for h in stops:
        cnt = h - k + 1
        if cnt >= 4:
            if cnt % 2: stage(); cnt -= 1
            nl += 1
            a(f"s_mov_b32 s23, {cnt // 2}")
            a(".p2align 6")
            a.label(f"{pfx}_LOOP{nl}")
            stage(); stage()
            a("s_sub_u32 s23, s23, 1")
            a("s_cmp_lg_u32 s23, 0")
            a(f"s_cbranch_scc1 {pfx}_LOOP{nl}")
        else:
            for _ in range(cnt): stage()
        if cnt > 0 and h in hooks: hooks[h]()
        k = max(k, h + 1)
    stage(last=True)

def y_addr(a):
    a("s_lshl_b32 s37, s22, 3")
    a("s_add_u32 s37, s37, s21")
    a("s_lshl_b32 s37, s37, 2")
    a("s_add_u32 s37, s37, s20")
    a("s_lshl_b32 s38, s37, 7")
    a(f"s_add_u32 s38, s38, {FL_F4}")
    a("s_lshl_b32 s37, s37, 13")
    a(f"s_add_u32 s37, s37, {WS_Y}")

def g_role(a):
    a(f"s_and_b32 s21, s{XCD}, 1")
    a("s_lshl_b32 s21, s21, 2")
    a(f"s_and_b32 s29, s{IDX}, 3")
    a("s_add_u32 s21, s21, s29")
    a(f"s_lshr_b32 s22, s{XCD}, 1")
    a("s_lshl_b32 s22, s22, 2")
    a(f"s_lshr_b32 s29, s{IDX}, 2")
    a("s_add_u32 s22, s22, s29")
    g_prep(a)
    a("s_cmp_ge_u32 s20, 4")
    a("s_cbranch_scc1 G_LOADER")
    mlp1_compute(a)
    stamp(a, 6)
    mlp1_epilogue(a)
    stamp(a, 7)
    g2_compute_setup(a, 1)
    stamp(a, 8)
    a("s_barrier")
    stamp(a, 9)
    def lvl1():
        a("s_waitcnt vmcnt(0)")
        flag_store(a, 9, 15, "s36", "1")
        srd(a, 16, P['b2'], SZ['b2'])
        a("s_lshl_b32 s29, s22, 7")
        a("s_lshl_b32 s30, s28, 6")
        a("s_add_u32 s29, s29, s30")
        a("v_add_u32 v92, s29, v2")
        a("v_lshlrev_b32 v93, 1, v92")
        a("v_lshlrev_b32 v92, 2, v92")
        a(f"s_mov_b32 s30, {WS_G}")
        for j in range(4):
            a(f"buffer_load_ushort v{84+j}, v93, s[16:19], 0 offen offset:{j*32}")
            a(f"buffer_load_dword v{88+j}, v92, s[12:15], s30 offen offset:{j*64}{SC}")
    g2_compute(a, 1, {env("L1_DELAY", 2): lvl1})
    stamp(a, 10)
    y_addr(a)
    a("s_waitcnt vmcnt(0)")
    for j in range(4):
        a(f"v_sub_f32 v{88+j}, 1.0, v{88+j}")
        a(f"v_lshlrev_b32 v{84+j}, 16, v{84+j}")
    for j in range(4): a(f"v_mul_f32 v{84+j}, v{84+j}, v{88+j}")
    a("v_lshlrev_b32 v8, 4, v1")
    a("s_add_u32 s39, s37, 4096")
    for i in range(4):
        for j in range(4):
            x = g2acc(1, i, j)
            for r in range(4): a(f"v_fma_f32 v{x+r}, v{x+r}, v{88+j}, v{84+j}")
            a(f"v_cvt_pk_bf16_f32 v{16+i*8+2*j}, v{x}, v{x+1}")
            a(f"v_cvt_pk_bf16_f32 v{17+i*8+2*j}, v{x+2}, v{x+3}")
        for h in range(2):
            q = i * 2 + h
            a(f"buffer_store_dwordx4 {vr(16+q*4,4)}, v8, s[12:15], s{37 if q < 4 else 39} offen offset:{(q%4)*1024}{SC}")
    a("v_mov_b32 v9, 0")
    a("s_waitcnt vmcnt(0)")
    flag_store(a, 9, 10, "s38", "1")
    stamp(a, 11)
    stamp_flush(a, 0, 12, 20)
    a("s_endpgm")
    a.label("G_LOADER")
    mlp1_loader(a)
    stamp(a, 6)
    mlp2_loader(a)
    stamp(a, 10)
    stamp_flush(a, 1, 12, 20)
    a("s_endpgm")

QA, QB, KF, VF, PA, PB, ONES, LA, LB = 16, 24, 32, 40, 48, 56, 64, 68, 72
SA, SB, OA, OB, NMA, NMB = 80, 96, 112, 128, 144, 160
VG, VL16 = 76, 77
T1, T2, TO, TU, WOT = 240, 241, 242, 243, 244
BOUND_T = 40.0
QL = 65536
KML = 98304 - 0

def a_role(a):
    pfx = "AT"
    a(f"s_and_b32 s21, s{IDX}, 7")
    a(f"s_lshl_b32 s22, s{XCD}, 1")
    a(f"s_lshr_b32 s29, s{IDX}, 3")
    a("s_add_u32 s22, s22, s29")
    a("s_and_b32 s56, s20, 3                ; st")
    a("s_lshr_b32 s57, s20, 2               ; hp")
    srd(a, 8, P['wq'], SZ['wq']); srd(a, 16, P['x'], SZ['x'])
    if env("PF_Q", 1):
        a("s_sub_u32 s34, s2, 128")
        a("s_lshl_b32 s34, s34, 3")
        a("s_add_u32 s34, s34, s20")
        a("s_lshl_b32 s34, s34, 7")
        a("v_lshlrev_b32 v14, 17, v2")
        a("s_mov_b64 exec, 0xffff")
        a("buffer_load_dword v254, v14, s[8:11], s34 offen")
        a("s_mov_b64 exec, -1")
    a(f"v_lshlrev_b32 v{VL16}, 4, v1        ; lane*16")
    for r in range(32): a(f"v_mov_b32 v{OA+r}, 0")
    for r in range(4):
        a(f"v_mov_b32 v{LA+r}, 0"); a(f"v_mov_b32 v{LB+r}, 0"); a(f"v_mov_b32 v{PB+4+r}, 0"); a(f"v_mov_b32 v{VF+4+r}, 0")
    a("v_lshrrev_b32 v7, 2, v2")
    a("v_xor_b32 v7, v7, v3")
    a("v_and_b32 v7, 1, v7")
    a("v_and_b32 v12, 3, v2")
    a("v_or_b32 v7, v7, v12")
    a("v_cmp_eq_u32 vcc, 0, v7")
    a("v_mov_b32 v12, 0x3f803f80")
    a("s_nop 0")
    a(f"v_cndmask_b32 v{ONES}, 0, v12, vcc")
    for r in range(1, 4): a(f"v_mov_b32 v{ONES+r}, v{ONES}")
    a(f"s_lshl_b32 s34, s{IDX}, 3")
    a("s_add_u32 s34, s34, s20")
    a("s_lshl_b32 s35, s34, 2               ; w1: row = gl>>4")
    a("v_add_u32 v6, s35, v3")
    a("s_movk_i32 s35, 7168")
    a("v_mul_lo_u32 v6, v6, s35")
    a("v_min_u32 v7, 13, v2")
    a("v_lshl_add_u32 v6, v7, 7, v6")
    a(f"s_lshr_b32 s35, s{XCD}, 1")
    a("s_mul_i32 s37, s35, 1792")
    a(f"v_add_u32 v{T1}, s37, v6")
    a(f"s_mul_i32 s37, s{IDX}, 7            ; w2: row = (7*idx + 4*hp)*32 + 8*st + lane/8")
    a("s_lshl_b32 s38, s57, 2")
    a("s_add_u32 s37, s37, s38")
    a("s_lshl_b32 s37, s37, 2")
    a("s_add_u32 s37, s37, s56")
    a("s_lshl_b32 s37, s37, 3")
    a("v_lshrrev_b32 v6, 3, v1")
    a("v_add_u32 v6, s37, v6")
    a("v_lshlrev_b32 v6, 12, v6")
    a("v_and_b32 v7, 7, v1")
    a("v_lshl_add_u32 v6, v7, 7, v6")
    a("s_lshl_b32 s35, s35, 10")
    a(f"v_add_u32 v{T2}, s35, v6")
    a("s_lshl_b32 s34, s34, 13")
    a(f"v_lshl_add_u32 v{TO}, v1, 7, s34")
    a(f"s_and_b32 s34, s{XCD}, 1")
    a("s_lshl_b32 s34, s34, 2")
    a("s_add_u32 s34, s34, s56")
    a("s_mul_i32 s34, s34, 112")
    a(f"s_mul_i32 s35, s{IDX}, 7")
    a("s_add_u32 s34, s34, s35")
    a("s_lshl_b32 s35, s57, 2")
    a("s_add_u32 s34, s34, s35")
    a("s_lshl_b32 s34, s34, 13")
    a(f"s_add_u32 s34, s34, {WS_U}")
    a(f"v_lshl_add_u32 v{TU}, v1, 7, s34")
    loader_ids(a)
    t_offsets(a, WOT, 11, 21, False)
    a(f"s_lshl_b32 s34, s{IDX}, 2")
    a("s_add_u32 s34, s34, s56              ; omega")
    a("s_lshr_b32 s58, s34, 3               ; sigma")
    a("s_and_b32 s34, s34, 7                ; sub")
    a(f"s_lshr_b32 s35, s{XCD}, 1")
    a("s_lshl_b32 s59, s35, 2")
    a("s_add_u32 s59, s59, 4")
    a("s_lshl_b32 s35, s35, 10")
    a("s_lshl_b32 s37, s34, 14")
    a("s_add_u32 s35, s35, s37")
    a("v_lshrrev_b32 v6, 3, v1")
    a("v_lshlrev_b32 v6, 12, v6")
    a("v_and_b32 v7, 7, v1")
    a("v_lshl_add_u32 v6, v7, 7, v6")
    a("v_add_u32 v6, s35, v6                ; w2 offset")
    a(f"s_and_b32 s35, s{XCD}, 1")
    a("s_lshl_b32 s35, s35, 2")
    a("s_lshr_b32 s37, s34, 1")
    a("s_add_u32 s35, s35, s37")
    a(f"s_mul_i32 s35, s35, {112*8192}")
    a("s_and_b32 s37, s34, 1")
    a("s_lshl_b32 s37, s37, 12")
    a("s_add_u32 s35, s35, s37")
    a(f"s_add_u32 s35, s35, {WS_U - 4096}")
    a("v_lshl_add_u32 v7, v1, 7, s35")
    a("v_cmp_gt_u32 vcc, 32, v1")
    a(f"v_mov_b32 v12, s{P['ws']}")
    a(f"v_mov_b32 v13, s{P['ws']+1}")
    a(f"v_mov_b32 v14, s{P['w2']}")
    a(f"v_mov_b32 v15, s{P['w2']+1}")
    a("v_cndmask_b32 v6, v7, v6, vcc")
    a("v_cndmask_b32 v12, v12, v14, vcc")
    a("v_cndmask_b32 v13, v13, v15, vcc")
    a("v_mov_b32 v14, 8192")
    a("v_mov_b32 v15, 0x20000")
    a("v_cndmask_b32 v249, v14, v15, vcc")
    a("v_add_co_u32 v250, vcc, v12, v6")
    a("s_nop 1")
    a("v_addc_co_u32 v251, vcc, 0, v13, vcc")
    a(f"s_lshl_b32 s34, s{IDX}, 2")
    a("s_add_u32 s34, s34, s56")
    a("s_mul_i32 s34, s34, 6")
    a("v_add_u32 v248, s34, v1")
    a("v_lshlrev_b32 v248, 7, v248")
    a("v_min_u32 v248, MK_END-MK_PC, v248")
    def touch(kind, k):
        if kind in ("m2", "m2w", "m2u"):
            if k < 12:
                a(f"s_add_u32 s34, s59, {4*(k & 3)}")
                a("s_and_b32 s34, s34, 15")
                a("s_lshr_b32 s35, s58, 1")
                a("s_add_u32 s34, s34, s35")
                a("s_mul_i32 s34, s34, 7")
                a("s_and_b32 s35, s58, 1")
                a("s_lshl_b32 s35, s35, 2")
                a("s_add_u32 s34, s34, s35")
                a(f"s_add_u32 s34, s34, {k >> 2}")
            else:
                a("s_add_u32 s34, s59, s58")
                a(f"s_add_u32 s34, s34, {8*(k - 12)}")
                a("s_and_b32 s34, s34, 15")
                a("s_mul_i32 s34, s34, 7")
                a("s_add_u32 s34, s34, 3")
            a("v_mad_u64_u32 v[14:15], s[36:37], s34, v249, v[250:251]")
            if kind == "m2w": a("s_mov_b32 exec_hi, 0")
            if kind == "m2u": a("s_mov_b32 exec_lo, 0")
            a("global_load_dword v254, v[14:15], off")
            if kind != "m2": a("s_mov_b64 exec, -1")
        elif kind == "wom":
            srd(a, 44, P['wo'], SZ['wo'])
            a("s_sub_u32 s34, s2, 128")
            a("s_lshl_b32 s34, s34, 2")
            a("s_add_u32 s34, s34, s56")
            a("s_lshl_b32 s34, s34, 12")
            a("v_lshlrev_b32 v14, 7, v1")
            a("s_mov_b32 exec_hi, 0")
            a("buffer_load_dword v254, v14, s[44:47], s34 offen")
            a("s_mov_b32 exec_hi, -1")
        elif kind == "code":
            a("s_mov_b64 exec, 63")
            a("global_load_dword v254, v248, s[4:5]")
            a("s_mov_b64 exec, -1")
        elif kind == "u":
            a(f"s_mov_b32 s34, {k*8192}")
            a(f"buffer_load_dword v254, v{TU}, s[12:15], s34 offen sc1")
        elif kind == "w1":
            srd(a, 44, P['w1'], SZ['w1'])
            a(f"s_mov_b32 s34, {k*512*7168}")
            a(f"buffer_load_dword v254, v{T1}, s[44:47], s34 offen")
        elif kind == "w2":
            srd(a, 44, P['w2'], SZ['w2'])
            a(f"s_mov_b32 s34, {k*32*4096}")
            a(f"buffer_load_dword v254, v{T2}, s[44:47], s34 offen")
        else:
            srd(a, 44, P['wo'], SZ['wo'])
            a(f"s_mov_b32 s34, {k << 20}")
            a(f"buffer_load_dword v254, v{TO}, s[44:47], s34 offen")
    a("s_cmp_ge_u32 s20, 4")
    a("s_cbranch_scc1 AQ_LOADER")
    g2_compute_setup(a, 0)
    a("s_waitcnt lgkmcnt(0)")
    tag_finish(a)
    stamp(a, 1)
    a("s_barrier")
    stamp(a, 2)
    g2_compute(a, 0)
    stamp(a, 3)
    cq = LOG2E / (DH ** 0.5)
    a(f"v_mov_b32 v14, {fhex(cq)}")
    a(f"v_mov_b32 v15, {fhex(cq)}")
    a("v_and_b32 v4, 1, v3")
    a("v_lshlrev_b32 v4, 9, v4")
    a("v_lshl_add_u32 v4, v2, 4, v4")
    a("v_lshrrev_b32 v5, 1, v3")
    a("v_lshl_add_u32 v4, v5, 3, v4")
    a("s_lshl_b32 s34, s27, 14")
    a("s_lshl_b32 s35, s28, 12")
    a("s_add_u32 s34, s34, s35")
    a(f"s_add_u32 s34, s34, {QL}")
    a("v_add_u32 v4, s34, v4")
    for i in range(4):
        for j in range(4):
            x = g2acc(0, i, j); o = 176 + (i*4+j)*2
            a(f"v_pk_mul_f32 {vr(x,2)}, {vr(x,2)}, v[14:15]")
            a(f"v_pk_mul_f32 {vr(x+2,2)}, {vr(x+2,2)}, v[14:15]")
            a(f"v_cvt_pk_bf16_f32 v{o}, v{x}, v{x+1}")
            a(f"v_cvt_pk_bf16_f32 v{o+1}, v{x+2}, v{x+3}")
            a(f"ds_write_b64 v4, {vr(o,2)} offset:{(i>>1)*8192 + (j>>1)*2048 + (i&1)*1024 + (j&1)*256}")
    a("s_waitcnt lgkmcnt(0)")
    a("s_branch AQ_JOIN")
    a.label("AQ_LOADER")
    NS = 16; R = 4; n = 8
    t_offsets(a, 8, 11, 21, True)
    a("v_lshrrev_b32 v4, 3, v1")
    a("v_and_b32 v5, 7, v1")
    a("v_xor_b32 v5, v5, v4")
    a("s_lshl_b32 s34, s22, 7")
    a("s_lshl_b32 s35, s27, 5")
    a("s_add_u32 s34, s34, s35")
    a("v_add_u32 v4, s34, v4")
    a("v_lshlrev_b32 v4, 11, v4")
    a("v_lshl_add_u32 v4, v5, 4, v4")
    for i in range(4): a(f"v_add_u32 v{12+i}, {i*(8*2048-1024)}, v4")
    lds_offs(a)
    a("s_mov_b32 s24, 0")
    a("s_and_b32 s26, s22, 1")
    a(f"s_lshl_b32 s26, s26, {10 if env('Q_ROT', 1) else 31}")
    a("s_and_b32 s26, s26, 2047")
    a("s_lshl_b32 s25, s26, 10")
    a("s_lshl_b32 s34, s28, 16")
    a("s_add_u32 s25, s25, s34")
    a("s_mov_b32 s50, s31")
    a("s_mov_b32 m0, s30")
    def qpost(ph):
        if ph == 0:
            a(f"s_add_u32 s25, s25, {64*2048}")
            a("s_and_b32 s25, s25, 0x1fffff")
            a("s_add_u32 s48, s26, 128")
        else:
            a("s_add_u32 m0, s24, s30")
            a("s_and_b32 s26, s48, 2047")
    def qissue(more=True): ring_issue(a, 0, [], more, NTQ, 16, [12, 13, 14, 15], NTQ, qpost)
    a(f"s_waitcnt vmcnt({0 if env('A_DELAY', 1) else 63}) lgkmcnt(0)")
    tag_finish(a)
    qissue(); qissue()
    stamp(a, 1)
    a(f"s_waitcnt vmcnt({n})")
    a("s_barrier")
    stamp(a, 2)
    qissue()
    a("s_mov_b32 s23, 6")
    a(".p2align 6")
    a.label("AQ_LOOP")
    for u in range(2):
        a(f"s_waitcnt vmcnt({n})")
        a("s_barrier")
        qissue()
    a("s_sub_u32 s23, s23, 1")
    a("s_cmp_lg_u32 s23, 0")
    a("s_cbranch_scc1 AQ_LOOP")
    a(f"s_waitcnt vmcnt({n})")
    a("s_barrier")
    qissue(more=False)
    a(f"s_waitcnt vmcnt({n})")
    a("s_barrier")
    a("s_cmp_eq_u32 s20, 4")
    a("s_cbranch_scc0 AQ_NP")
    a(f"s_mov_b32 s34, {FL_F1B}")
    a(f"s_mov_b32 s35, {FL_F1B + 8192}")
    a("v_lshlrev_b32 v4, 7, v1")
    poll(a, [(4, "s34", 0), (4, "s35", 0)], 12, "ATP", sleep=env("KV_SLEEP", 8))
    a.label("AQ_NP")
    a("s_waitcnt vmcnt(0)")
    a("s_barrier")
    stamp(a, 3)
    a(f"s_mov_b32 s34, {WS_KN}")
    a("v_lshlrev_b32 v12, 7, v1")
    a(f"buffer_load_dword v13, v12, s[12:15], s34 offen{SC}")
    a("s_lshl_b32 s35, s27, 13")
    a(f"s_add_u32 s34, s35, {WS_KV}")
    for h in range(2):
        a(f"s_add_u32 m0, s35, {131072 + h*4096}")
        a("s_nop 0")
        for i in range(4): a(f"buffer_load_dwordx4 v{VL16}, s[12:15], s34 offen offset:{i*1024}{SC} lds")
        a("s_add_u32 s34, s34, 4096")
    a("s_waitcnt vmcnt(8)")
    wave_reduce(a, [13], op="v_max_f32")
    a("v_mov_b32 v12, 0")
    a("s_mov_b32 exec_lo, 0")
    a("s_mov_b32 exec_hi, 0x80000000")
    a("ds_write_b32 v12, v13")
    a("s_mov_b64 exec, -1")
    a("s_waitcnt vmcnt(0) lgkmcnt(0)")
    a.label("AQ_JOIN")
    stamp(a, 4)
    a("s_barrier")
    stamp(a, 14)
    a(f"v_mov_b32 v4, v{VL16}")
    a("s_lshl_b32 s34, s57, 14")
    a("s_lshl_b32 s35, s56, 11")
    a("s_add_u32 s34, s34, s35")
    a(f"s_add_u32 s34, s34, {QL}")
    a("v_add_u32 v12, s34, v4")
    a("v_mov_b32 v13, 0")
    a(f"ds_read_b128 {vr(QA,4)}, v12")
    a(f"ds_read_b128 {vr(QA+4,4)}, v12 offset:1024")
    a(f"ds_read_b128 {vr(QB,4)}, v12 offset:8192")
    a(f"ds_read_b128 {vr(QB+4,4)}, v12 offset:9216")
    a("ds_read_b32 v78, v13")
    a("v_add_u32 v5, 131072, v4")
    a("v_add_u32 v6, 147456, v4")
    a(f"ds_read_b128 {vr(KF,4)}, v5")
    a(f"ds_read_b128 {vr(KF+4,4)}, v5 offset:1024")
    a(f"ds_read_b128 {vr(VF,4)}, v5 offset:2048")
    a("s_lshl_b32 s27, s20, 11              ; w*2048")
    a(f"s_add_u32 s28, s27, {WS_KV + 2*16384}")
    a("s_mov_b32 s24, s27")
    a("s_waitcnt lgkmcnt(3)")
    a("s_barrier")
    b = Asm()
    b("v_mov_b32 v12, 0")
    for i in range(8):
        b(f"v_dot2_f32_bf16 v12, v{QA+i}, v{QA+i}, v12")
        b(f"v_dot2_f32_bf16 v13, v{QB+i}, v{QB+i}, v13")
    b("s_nop 2")
    b("v_mov_b32 v14, v12")
    b("v_mov_b32 v15, v13")
    b("s_nop 1")
    b("v_permlane32_swap_b32 v12, v14")
    b("v_permlane32_swap_b32 v13, v15")
    b(f"v_mul_f32 v78, {fhex(1.03)}, v78")
    b("v_add_f32 v12, v12, v14")
    b("v_add_f32 v13, v13, v15")
    b("v_mul_f32 v12, v12, v78")
    b("v_mul_f32 v13, v13, v78")
    b("v_sqrt_f32 v12, v12")
    b("v_sqrt_f32 v13, v13")
    b(f"v_mov_b32 v14, {fhex(BOUND_T)}")
    b("v_max_f32 v15, v12, v13")
    kvc = ["s_mov_b32 m0, s24", "s_add_u32 s24, s24, 16384",
           f"buffer_load_dwordx4 v4, s[12:15], s28 offen{SC} lds",
           f"buffer_load_dwordx4 v4, s[12:15], s28 offen offset:1024{SC} lds", "s_add_u32 s28, s28, 16384"]
    for x in interleave([l.strip() for l in b.lines], kvc * 3, 0, len(b.lines)): a(x)
    a("v_cmp_nle_f32 vcc, v15, v14")
    a("s_nop 1")
    a(f"s_cbranch_vccnz {pfx}_EXACT")
    a.label(f"{pfx}_FAST")
    for r in range(16):
        a(f"v_sub_f32 v{NMA+r}, 0, v12"); a(f"v_sub_f32 v{NMB+r}, 0, v13")
    TT = [0, 3]
    plan = eval(os.environ.get("PF_PLAN", "[{0:('w1',1), 2:('w1',2), 4:('w1',3), 7:('m2w',1), 10:('m2',3), 11:('m2',5), 12:('m2',7), 13:('m2',9), 14:('m2',11), 15:('m2',13)}, {0:('w1',1), 1:('w1',2), 3:('w1',3), 4:('wom',0), 6:('m2w',0), 7:('m2w',2), 9:('m2u',2), 10:('m2',4), 11:('m2',6), 12:('m2',8), 13:('m2',10), 14:('m2',12)}]"))
    ev = [sum(1 << c for c in plan[hp]) for hp in range(2)]
    a("s_cmp_eq_u32 s57, 0")
    a(f"s_mov_b32 s40, 0x{ev[0]:x}")
    a(f"s_cselect_b32 s40, s40, 0x{ev[1]:x}")
    a("s_movk_i32 s41, 0x2222")
    a("s_mov_b32 s23, 0                     ; chunk c")
    a("s_mov_b32 s26, 147456")
    a("s_waitcnt lgkmcnt(0)")
    a(f"{M32} {vr(SA,16)}, {vr(KF,4)}, {vr(QA,4)}, {vr(NMA,16)}")
    a(f"{M32} {vr(SA,16)}, {vr(KF+4,4)}, {vr(QA+4,4)}, {vr(SA,16)}")
    a("s_nop 8")
    tab = eval(os.environ.get('AT_TAB', '[[2, 2, 2, 0, 2, 2, 2, 0], [1] * 8]'))
    def step(a, cur, tile, hp):
        if cur == 'A':
            S_, P_, O_, L_ = SA, PA, OA, LA
            Sn, Qn, NMn, Po, Oo, Lo = SB, QB, NMB, PB, OB, LB
        else:
            S_, P_, O_, L_ = SB, PB, OB, LB
            Sn, Qn, NMn, Po, Oo, Lo = SA, QA, NMA, PA, OA, LA
        e = lambda r: a(f"v_exp_f32 v{S_+r}, v{S_+r}")
        c = lambda i: a(f"v_cvt_pk_bf16_f32 v{P_+i}, v{S_+2*i}, v{S_+2*i+1}")
        nreg, noff = ("v5", (tile + 1) * 4096) if tile < 3 else ("v6", 0)
        if cur == 'A':
            if tile == 3:
                a("s_bitcmp1_b32 s41, s23")
                a(f"s_cbranch_scc1 {pfx}_EVB_{hp}")
                a.label(f"{pfx}_EBB_{hp}")
                a("s_cmp_gt_u32 s23, 10")
                a(f"s_cbranch_scc1 {pfx}_NK_{hp}")
                for x in kvc: a(x)
                a("s_cmp_ge_u32 s24, 163840")
                a("s_cselect_b32 s24, s27, s24")
                a.label(f"{pfx}_NK_{hp}")
            if tile == TT[hp]:
                a("s_bitcmp1_b32 s40, s23")
                a(f"s_cbranch_scc1 {pfx}_EVT_{hp}")
                a.label(f"{pfx}_EBT_{hp}")
        k_ = 2 * tile + (cur == 'B')
        if tab[hp][k_] != tab[hp][k_ - 1] and not (tab[hp][k_] == 2 and env("AT_LOWEND", 1)): a(f"s_setprio {tab[hp][k_]}")
        if cur == 'B': a("s_waitcnt lgkmcnt(1)")
        a(f"{M32} {vr(Sn,16)}, {vr(KF,4)}, {vr(Qn,4)}, {vr(NMn,16)}")
        e(0); e(1); e(2); e(3)
        a(f"{M32} {vr(Sn,16)}, {vr(KF+4,4)}, {vr(Qn+4,4)}, {vr(Sn,16)}")
        if cur == 'A':
            a(f"ds_read_b128 {vr(KF,4)}, {nreg} offset:{noff}")
            a(f"ds_read_b128 {vr(KF+4,4)}, {nreg} offset:{noff+1024}")
        c(0); c(1); e(4); e(5); e(6)
        if cur == 'B': a("s_waitcnt lgkmcnt(0)")
        a(f"{M32} {vr(Oo,16)}, {vr(VF+4,4)}, {vr(Po+4,4)}, {vr(Oo,16)}")
        if cur == 'A':
            a(f"ds_read_b128 {vr(VF+4,4)}, v5 offset:{tile*4096+3072}")
        e(7); c(2); c(3); e(8); e(9)
        a(f"{M16} {vr(Lo,4)}, {vr(ONES,4)}, {vr(Po+4,4)}, {vr(Lo,4)}")
        e(10); e(11)
        if cur == 'A': a("s_waitcnt lgkmcnt(3)")
        a(f"{M32} {vr(O_,16)}, {vr(VF,4)}, {vr(P_,4)}, {vr(O_,16)}")
        if cur == 'B':
            a(f"ds_read_b128 {vr(VF,4)}, {nreg} offset:{noff+2048}")
        if cur == 'B' and tile == 3:
            a("s_add_u32 s26, s26, 16384")
            a("s_cmp_ge_u32 s26, 163840")
            a("s_cselect_b32 s26, 0, s26")
            a("s_add_u32 s23, s23, 1")
        c(4); c(5); e(12); e(13); e(14)
        a(f"{M16} {vr(L_,4)}, {vr(ONES,4)}, {vr(P_,4)}, {vr(L_,4)}")
        e(15)
        if hp == 0 and tab[0][k_] == 0 and env("AT_LOWEND", 1): a("s_setprio 2")
        c(6); c(7)
    stamp(a, 5)
    a("s_cmp_eq_u32 s57, 1")
    a(f"s_cbranch_scc1 {pfx}_MP1")
    for hp in range(2):
        a.label(f"{pfx}_MP{hp}")
        a(f"s_setprio {tab[hp][0]}")
        b = Asm()
        for tile in range(4):
            step(b, 'A', tile, hp); step(b, 'B', tile, hp)
        if PROF["on"] and env("PROF_AT", 0):
            b("s_memtime s[94:95]")
            b("s_memrealtime s[96:97]")
            b("s_lshl_b32 s60, s23, 1")
            b("s_add_u32 s60, s60, 30")
            b("s_add_u32 s61, s60, 1")
            b("s_waitcnt lgkmcnt(0)")
            b("s_mov_b32 m0, s60")
            b("v_writelane_b32 v255, s94, m0")
            b("s_mov_b32 m0, s61")
            b("v_writelane_b32 v255, s96, m0")
        b("v_mov_b32 v5, v6")
        b("v_add_u32 v6, s26, v4")
        b("s_cmp_lt_u32 s23, 16")
        b(f"s_cbranch_scc1 {pfx}_ML{hp}")
        a(".p2align 6")
        a.label(f"{pfx}_ML{hp}")
        for l in align8(b.lines): a(l)
        if hp == 0: a(f"s_branch {pfx}_MEND")
    a.label(f"{pfx}_MEND")
    stamp(a, 6)
    a(f"{M32} {vr(OB,16)}, {vr(VF+4,4)}, {vr(PB+4,4)}, {vr(OB,16)}")
    a(f"{M16} {vr(LB,4)}, {vr(ONES,4)}, {vr(PB+4,4)}, {vr(LB,4)}")
    a("s_setprio 3")
    a("s_lshl_b32 s34, s22, 18")
    a("s_lshl_b32 s35, s21, 2")
    a("s_lshl_b32 s33, s57, 1")
    a("s_add_u32 s35, s35, s33")
    a("s_lshl_b32 s35, s35, 13")
    a("s_add_u32 s34, s34, s35")
    a("s_lshl_b32 s36, s56, 11              ; 2st*1024")
    a("s_add_u32 s34, s34, s36")
    a(f"s_add_u32 s34, s34, {WS_O}")
    a("s_add_u32 s35, s34, 8192")
    a("v_and_b32 v7, 1, v3")
    a("v_lshlrev_b32 v7, 10, v7")
    a("v_lshrrev_b32 v12, 1, v3")
    a("v_lshl_add_u32 v7, v12, 8, v7")
    a("v_lshl_add_u32 v7, v2, 4, v7")
    a("s_lshl_b32 s33, s57, 15")
    a("s_add_u32 s33, s33, s36")
    a(f"s_add_u32 s33, s33, {2*M2_SLOT + 16384}")
    a("v_add_u32 v8, s33, v7")
    a("s_lshl_b32 s36, s22, 3")
    a("s_add_u32 s36, s36, s21")
    a("s_lshl_b32 s36, s36, 3")
    a("s_add_u32 s36, s36, s20")
    a("s_lshl_b32 s36, s36, 7")
    a(f"s_add_u32 s36, s36, {FL_F3}")
    a("s_waitcnt vmcnt(0) lgkmcnt(0)")
    for hd, (O_, L_, P_, so) in enumerate(((OA, LA, PA, 34), (OB, LB, PB, 35))):
        a(f"v_rcp_f32 v12, v{L_}")
        a("s_nop 0")
        a(f"v_mul_f32 v12, v12, v{VG}")
        for r in range(16): a(f"v_mul_f32 v{O_+r}, v{O_+r}, v12")
        for p in range(2):
            a(f"v_cvt_pk_bf16_f32 v{P_+4*p}, v{O_+4*p}, v{O_+4*p+1}")
            a(f"v_cvt_pk_bf16_f32 v{P_+4*p+1}, v{O_+4*p+2}, v{O_+4*p+3}")
            a(f"v_cvt_pk_bf16_f32 v{P_+4*p+2}, v{O_+8+4*p}, v{O_+8+4*p+1}")
            a(f"v_cvt_pk_bf16_f32 v{P_+4*p+3}, v{O_+8+4*p+2}, v{O_+8+4*p+3}")
            a(f"buffer_store_dwordx4 {vr(P_+4*p,4)}, v7, s[12:15], s{so} offen offset:{p*512}{SC}")
            a(f"ds_write_b128 v8, {vr(P_+4*p,4)} offset:{hd*8192 + p*512}")
    a("s_setprio 0")
    a("s_cmp_ge_u32 s20, 4")
    a("s_cbranch_scc1 AO_LOADER")
    g2_compute_setup(a, 2)
    srd(a, 48, P['out'], SZ['out'])
    y_addr(a)
    a("s_add_u32 s39, s37, 4096")
    a("s_mov_b32 s33, 0")
    a("v_lshlrev_b32 v80, 4, v1")
    a("v_mov_b32 v82, 0")
    a("s_waitcnt lgkmcnt(0)")
    stamp(a, 7)
    a("s_barrier")
    stamp(a, 9)
    YB = 84
    def oflag():
        a("s_waitcnt vmcnt(0)")
        flag_store(a, 9, 15, "s36", "1")
    def ypoll():
        a("buffer_load_dword v81, v82, s[12:15], s38 offen sc1")
    def yloads():
        for q in range(8):
            a(f"buffer_load_dwordx4 {vr(YB+4*q,4)}, v80, s[12:15], s{37 if q < 4 else 39} offen offset:{(q%4)*1024}{SC}")
    def ytry():
        a("s_waitcnt vmcnt(0)")
        a(f"v_cmp_ne_u32 vcc, s{TAG}, v81")
        a("s_nop 1")
        a("s_cbranch_vccnz AO_NY")
        yloads()
        a("s_mov_b32 s33, 1")
        a.label("AO_NY")
    g2_compute(a, 2, {0: oflag, 11: ypoll, 13: ytry})
    stamp(a, 10)
    a("s_cmp_eq_u32 s33, 1")
    a("s_cbranch_scc1 AO_HY")
    poll(a, [(82, "s38", 0)], 81, "YP", sleep=4)
    yloads()
    a.label("AO_HY")
    stamp(a, 11)
    a("s_lshl_b32 s29, s22, 7")
    a("s_lshl_b32 s30, s28, 6")
    a("s_add_u32 s29, s29, s30")
    a("v_add_u32 v4, s29, v2")
    a("v_lshlrev_b32 v10, 11, v4")
    a("s_lshl_b32 s30, s21, 8")
    a("s_lshl_b32 s31, s27, 7")
    a("s_add_u32 s30, s30, s31")
    a("v_add_u32 v10, s30, v10")
    a("v_and_b32 v5, 1, v3")
    a("v_lshl_add_u32 v10, v5, 5, v10")
    a("v_lshrrev_b32 v5, 1, v3")
    a("v_lshl_add_u32 v10, v5, 4, v10")
    for sidx in range(4): a(f"s_mov_b32 s{40+sidx}, {sidx*16*2048}")
    for ip in range(2):
        a(f"s_waitcnt vmcnt(4)")
        for j in range(4):
            o = 16 + (j*2+ip) * 4
            for w_, i in enumerate((2*ip, 2*ip+1)):
                X = g2acc(2, i, j); y = YB + i*8 + 2*j; t = 48 + 4*w_
                a(f"v_lshlrev_b32 v{t}, 16, v{y}")
                a(f"v_and_b32 v{t+1}, 0xffff0000, v{y}")
                a(f"v_lshlrev_b32 v{t+2}, 16, v{y+1}")
                a(f"v_and_b32 v{t+3}, 0xffff0000, v{y+1}")
                a(f"v_pk_add_f32 {vr(X,2)}, {vr(X,2)}, {vr(t,2)}")
                a(f"v_pk_add_f32 {vr(X+2,2)}, {vr(X+2,2)}, {vr(t+2,2)}")
                a(f"v_cvt_pk_bf16_f32 v{o+2*w_}, v{X}, v{X+1}")
                a(f"v_cvt_pk_bf16_f32 v{o+2*w_+1}, v{X+2}, v{X+3}")
            a("s_nop 1")
            a(f"v_permlane16_swap_b32 v{o}, v{o+2}")
            a(f"v_permlane16_swap_b32 v{o+1}, v{o+3}")
            a(f"buffer_store_dwordx4 {vr(o,4)}, v10, s[48:51], s{40+j} offen offset:{ip*64}{['', ' sc1', ' nt', ' sc0 sc1'][env('OUT_SC', 0)]}")
    stamp(a, 12)
    if PROF["on"]: a("s_waitcnt vmcnt(0)")
    stamp(a, 13)
    stamp_flush(a, 2, 12, 20)
    a("s_endpgm")
    a.label("AO_LOADER")
    srd(a, 8, P['wo'], SZ['wo'])
    loader_ids(a)
    for i in range(4): a(f"v_mov_b32 v{8+i}, v{WOT+i}")
    a("v_mov_b32 v12, 0")
    a("s_lshl_b32 s32, s29, 12")
    a("s_lshl_b32 s31, s22, 18")
    a("s_add_u32 s31, s31, s32")
    a(f"s_add_u32 s31, s31, {WS_O}")
    a("v_lshl_add_u32 v7, v1, 4, s31")
    lds_offs(a)
    a(f"s_mov_b32 s24, {4*M2_SLOT}")
    a("s_lshl_b32 s33, s21, 1")
    a("s_add_u32 s49, s33, 17")
    a("s_add_u32 s33, s33, 3")
    a("s_lshl_b32 s34, s22, 13")
    a(f"s_add_u32 s34, s34, {FL_F3}")
    a("v_lshlrev_b32 v16, 7, v1")
    a("s_lshl_b32 s35, s29, 1")
    a("s_mov_b32 s46, 0x33333333")
    a("s_lshl_b32 s46, s46, s35")
    a("s_and_b32 s44, s46, 0xf0f0f0f0")
    a("s_mov_b32 s45, s44")
    a("s_lshl_b32 s47, s21, 3")
    a("s_lshl_b64 s[40:41], 0xff, s47")
    a("s_mov_b64 s[52:53], 0")
    g = Gate(a, "L2")
    nxt = ["s_and_b32 s47, s33, 15", "s_lshl_b32 s48, s47, 1", "s_add_u32 s48, s48, s28", "s_lshl_b32 s47, s47, 2",
           "s_add_u32 s47, s47, s35", "s_lshl_b64 s[38:39], 3, s47"]
    inc = ["s_add_u32 s33, s33, 2", "s_cmp_eq_u32 s33, s49", "s_addc_u32 s33, s33, 0"]
    def post(ph):
        if ph == 0:
            a("s_lshl_b32 s25, s48, 16")
            g.check()
        else:
            a("s_add_u32 m0, s24, s30")
            a("s_lshl_b32 s26, s48, 13")
    def issue(more=True, mid=None):
        ring_issue(a, 2, (inc + nxt) if more else [], more, NTQ, 12, [7]*4, SC, post, mid)
    for x in nxt: a(x)
    a("s_add_u32 s50, s24, s31")
    a("s_waitcnt vmcnt(0) lgkmcnt(0)")
    flag_store(a, 12, 13, "s36", "1")
    stamp(a, 7)
    a(f"s_sleep {env('L2_SLEEP', 10)}")
    post(0); post(1)
    stamp(a, 8)
    issue()
    stamp(a, 9)
    a("s_barrier")
    issue(mid=lambda: a("s_barrier"))
    issue(mid=lambda: a("s_waitcnt vmcnt(12)\ns_barrier"))
    a("s_mov_b32 s23, 5")
    a(".p2align 6")
    a.label("L2_LOOP")
    for u in range(2):
        a("s_waitcnt vmcnt(8)")
        if u == 0: g.refresh_issue()
        else: g.refresh_take()
        a("s_barrier")
        issue()
    a("s_mov_b32 s44, s46")
    a("s_mov_b32 s45, s46")
    if PROF["on"] and env("PROF_Q", 0):
        a("s_memtime s[94:95]")
        a("s_memrealtime s[96:97]")
        a("s_lshl_b32 s60, s23, 1")
        a("s_add_u32 s60, s60, 42")
        a("s_add_u32 s61, s60, 1")
        a("s_waitcnt lgkmcnt(0)")
        a("s_mov_b32 s62, m0")
        a("s_mov_b32 m0, s60")
        a("v_writelane_b32 v255, s94, m0")
        a("s_mov_b32 m0, s61")
        a("v_writelane_b32 v255, s96, m0")
        a("s_mov_b32 m0, s62")
    a("s_sub_u32 s23, s23, 1")
    a("s_cmp_lg_u32 s23, 0")
    a("s_cbranch_scc1 L2_LOOP")
    a("s_waitcnt vmcnt(8)")
    a("s_barrier")
    issue(more=False)
    a("s_waitcnt vmcnt(8)")
    a("s_barrier")
    a("s_waitcnt vmcnt(0)")
    a("s_barrier")
    g.emit()
    stamp(a, 10)
    a("s_cmp_eq_u32 s2, 128")
    a("s_cbranch_scc0 A_LEND")
    a("s_cmp_eq_u32 s20, 4")
    a("s_cbranch_scc0 A_LEND")
    a("v_lshlrev_b32 v16, 10, v1")
    a(f"s_mov_b32 s28, {FL_F3}")
    a(f"s_mov_b32 s29, {FL_F3 + 65536}")
    poll(a, [(16, "s28", 0), (16, "s29", 0)], 17, "EP")
    a(f"s_mov_b32 s28, {FL_EPOCH}")
    flag_store(a, 12, 13, "s28", "1")
    a.label("A_LEND")
    stamp_flush(a, 3, 12, 20)
    a("s_endpgm")
    for hp in range(2):
        a.label(f"{pfx}_EVB_{hp}")
        a("s_cmp_eq_u32 s23, 5")
        a(f"s_cbranch_scc0 {pfx}_NG_{hp}")
        a("s_lshl_b32 s32, s22, 7")
        a("s_lshl_b32 s33, s56, 5")
        a("s_add_u32 s32, s32, s33")
        a("s_lshl_b32 s33, s32, 3")
        a(f"s_add_u32 s33, s33, {FL_F1C}")
        a("v_and_b32 v14, 1, v1")
        a("v_lshlrev_b32 v14, 7, v14")
        poll(a, [(14, "s33", 0)], 15, "GTP", sleep=4)
        a("s_lshl_b32 s33, s32, 2")
        a(f"s_add_u32 s33, s33, {WS_G}")
        a("v_and_b32 v14, 31, v1")
        a("v_lshlrev_b32 v14, 2, v14")
        a("s_barrier")
        a(f"buffer_load_dword v{VG}, v14, s[12:15], s33 offen{SC}")
        a(f"s_branch {pfx}_EBB_{hp}")
        a.label(f"{pfx}_NG_{hp}")
        a("s_waitcnt vmcnt(0)")
        a("s_barrier")
        a("s_cmp_eq_u32 s23, 13")
        a(f"s_cbranch_scc0 {pfx}_EBB_{hp}")
        if hp == 1: a("s_setprio 3")
        srd(a, 44, P['wo'], SZ['wo'])
        a("s_lshl_b32 s34, s21, 2")
        a("s_lshr_b32 s35, s20, 1")
        a("s_add_u32 s34, s34, s35")
        a("s_lshl_b32 s34, s34, 16")
        a("s_and_b32 s35, s20, 1")
        a("s_lshl_b32 s35, s35, 13")
        a("s_and_b32 s36, s20, 2")
        a("s_lshl_b32 s36, s36, 11")
        a("s_add_u32 s35, s35, s36")
        a(f"s_add_u32 m0, s35, {(2 + hp)*M2_SLOT}")
        a("s_nop 0")
        for i in range(4): a(f"buffer_load_dwordx4 v{WOT+i}, s[44:47], s34 offen offset:{i*1024} lds")
        a(f"s_branch {pfx}_EBB_{hp}")
        def bis(cs):
            if len(cs) == 1:
                acts = plan[hp][cs[0]]
                for act in (acts if isinstance(acts, list) else [acts]): touch(*act)
                a(f"s_branch {pfx}_EBT_{hp}")
                return
            m = len(cs) // 2
            a(f"s_cmp_ge_u32 s23, {cs[m]}")
            a(f"s_cbranch_scc1 {pfx}_T{hp}_{cs[m]}")
            bis(cs[:m])
            a.label(f"{pfx}_T{hp}_{cs[m]}")
            bis(cs[m:])
        a.label(f"{pfx}_EVT_{hp}")
        bis(sorted(plan[hp]))
    a.label(f"{pfx}_EXACT")
    a(f"s_mov_b32 s34, {WS_KV}")
    a("v_mov_b32 v12, 0xff800000")
    a("v_mov_b32 v13, 0xff800000")
    a("s_mov_b32 s23, 64")
    a.label(f"{pfx}_MX")
    a(f"buffer_load_dwordx4 {vr(PA,4)}, v4, s[12:15], s34 offen{SC}")
    a(f"buffer_load_dwordx4 {vr(PA+4,4)}, v4, s[12:15], s34 offen offset:1024{SC}")
    a("s_add_u32 s34, s34, 4096")
    a("s_waitcnt vmcnt(0)")
    a(f"{M32} {vr(SA,16)}, {vr(PA,4)}, {vr(QA,4)}, 0")
    a(f"{M32} {vr(SB,16)}, {vr(PA,4)}, {vr(QB,4)}, 0")
    a(f"{M32} {vr(SA,16)}, {vr(PA+4,4)}, {vr(QA+4,4)}, {vr(SA,16)}")
    a(f"{M32} {vr(SB,16)}, {vr(PA+4,4)}, {vr(QB+4,4)}, {vr(SB,16)}")
    a("s_nop 15")
    for r in range(0, 16, 2): a(f"v_max3_f32 v12, v12, v{SA+r}, v{SA+r+1}")
    for r in range(0, 16, 2): a(f"v_max3_f32 v13, v13, v{SB+r}, v{SB+r+1}")
    a("s_sub_u32 s23, s23, 1")
    a("s_cmp_lg_u32 s23, 0")
    a(f"s_cbranch_scc1 {pfx}_MX")
    a("v_mov_b32 v14, v12")
    a("v_mov_b32 v15, v13")
    a("s_nop 1")
    a("v_permlane32_swap_b32 v12, v14")
    a("v_permlane32_swap_b32 v13, v15")
    a("v_max_f32 v12, v12, v14")
    a("v_max_f32 v13, v13, v15")
    a(f"s_branch {pfx}_FAST")

def gen_mega(a, name):
    kernel_begin(a, name)
    a("s_cmp_ge_u32 s2, 256")
    a("s_cbranch_scc1 MK_END")
    a("s_load_dwordx16 s[64:79], s[0:1], 0")
    a("s_load_dwordx8 s[80:87], s[0:1], 64")
    a("s_load_dwordx4 s[88:91], s[0:1], 96")
    stamp_init(a)
    a("v_lshrrev_b32 v2, 6, v0")
    a("v_and_b32 v1, 63, v0")
    a("v_readfirstlane_b32 s20, v2")
    a("v_and_b32 v2, 15, v1")
    a("v_lshrrev_b32 v3, 4, v1")
    a(f"s_and_b32 s{XCD}, s2, 7")
    a(f"s_lshr_b32 s{IDX}, s2, 3")
    if env("PF_CODE", 1):
        a("s_getpc_b64 s[4:5]")
        a.label("MK_PC")
        a(f"s_lshl_b32 s27, s{IDX}, 4")
        a("v_add_u32 v4, s27, v2")
        a("v_lshlrev_b32 v4, 7, v4")
        a("v_min_u32 v4, MK_END-MK_PC, v4")
        a("s_cmp_eq_u32 s20, 7")
        a("s_cbranch_scc0 MK_NPC")
        a("s_mov_b64 exec, 0xffff")
        a("global_load_dword v254, v4, s[4:5]")
        a("s_mov_b64 exec, -1")
        a.label("MK_NPC")
    a(f"s_mov_b32 s27, {FL_EPOCH}")
    a("s_waitcnt lgkmcnt(0)")
    stamp(a, 0)
    a(f"s_load_dword s{TAG}, s[90:91], s27")
    srd(a, 12, P['ws'], WS_SIZE)
    if env("PF_TLB", 0):
        a("s_cmp_eq_u32 s20, 6")
        a("s_cbranch_scc0 MK_NTL")
        srd(a, 8, P['out'], SZ['out'])
        srd(a, 16, P['w2'], SZ['w2'])
        a(f"v_lshlrev_b32 v4, {env('PF_TLB', 0)}, v1")
        a("buffer_load_dword v254, v4, s[12:15], 0 offen nt")
        a("buffer_load_dword v254, v4, s[8:11], 0 offen nt")
        a("buffer_load_dword v254, v4, s[16:19], 0 offen nt")
        a.label("MK_NTL")
    a(f"s_cmp_ge_u32 s{IDX}, 16")
    a(f"s_cbranch_scc1 A_ROLE")
    g_role(a)
    a.label("A_ROLE")
    a(f"s_sub_u32 s{IDX}, s{IDX}, 16")
    a_role(a)
    a.label("MK_END")
    a("s_endpgm")
    return kernel_desc(name, 256)
```

```python
import os
from common import *

def env(n, d): return int(os.environ.get(n, d))

WS_FL = 17 << 20
FL_EPOCH = WS_FL
FL_F1 = WS_FL + 0x10000
FL_F1B = WS_FL + 0x20000
FL_F2 = WS_FL + 0x80000
FL_F3 = WS_FL + 0xa0000
FL_F1C = WS_FL + 0x30000
FL_F4 = WS_FL + 0x50000
WS_Y = 32 << 20
WS_SIZE = 48 << 20
P = dict(x=64, wq=66, wk=68, wv=70, wo=72, w1=76, b1=78, w2=80, b2=82, gw=84, out=86, ws=90)
TAG, XCD, IDX = 92, 93, 98
M32 = "v_mfma_f32_32x32x16_bf16"
M16 = "v_mfma_f32_16x16x32_bf16"
SC = " sc1"
NTW = " nt" if env("NT_W", 0) else ""
NTQ = " nt" if env("NT_Q", 0) else ""
NTP = " nt" if env("NT_P", 0) else ""
NTX = " nt" if env("NT_X", 1) else ""
_uid = [0]

def poll(a, loads, tmp, name, sleep=1):
    _uid[0] += 1
    L = f"{name}_{_uid[0]}"
    a("s_mov_b32 s99, 0x40000")
    a.label(f"{L}_P")
    for k, (v, so, off) in enumerate(loads):
        a(f"buffer_load_dword v{tmp+k}, v{v}, s[12:15], {so} offen offset:{off} sc1")
    a("s_waitcnt vmcnt(0)")
    for k in range(len(loads)):
        a(f"v_xor_b32 v{tmp+k}, s{TAG}, v{tmp+k}")
    for k in range(1, len(loads)):
        a(f"v_or_b32 v{tmp}, v{tmp}, v{tmp+k}")
    a(f"v_cmp_ne_u32 vcc, 0, v{tmp}")
    a("s_sub_u32 s99, s99, 1")
    a(f"s_cbranch_vccz {L}_D")
    a(f"s_sleep {sleep}")
    a("s_cmp_lg_u32 s99, 0")
    a(f"s_cbranch_scc1 {L}_P")
    a.label(f"{L}_D")

def flag_store(a, vaddr, vdat, soff, mask=None):
    a(f"v_mov_b32 v{vdat}, s{TAG}")
    a(f"v_lshlrev_b32 v{vaddr}, 2, v1")
    a("s_mov_b32 exec_hi, 0")
    a(f"buffer_store_dword v{vdat}, v{vaddr}, s[12:15], {soff} offen sc1")
    a("s_mov_b32 exec_hi, -1")

def tag_finish(a):
    a(f"s_mul_i32 s{TAG}, s{TAG}, 1664525")
    a(f"s_add_u32 s{TAG}, s{TAG}, 1013904223")

def slot_advance(sreg, stride, nslots):
    return [f"s_add_u32 s{sreg}, s{sreg}, {stride}",
            f"s_cmp_eq_u32 s{sreg}, {stride*nslots}",
            f"s_cselect_b32 s{sreg}, 0, s{sreg}"]

LW, LX, LH = 0, 65536, 131072
L1T, L1F = 200, 208
BIAS = 240
def g_prep(a):
    srd(a, 8, P['x'], SZ['x'])
    a(f"s_and_b32 s26, s{IDX}, 1            ; kv")
    a(f"s_lshl_b32 s27, s{XCD}, 8")
    a(f"s_lshl_b32 s28, s{IDX}, 4")
    a("s_add_u32 s35, s27, s28")
    a("s_and_b32 s34, s35, 0xffffffe0")
    a(f"s_lshl_b32 s33, s{XCD}, 4")
    a(f"s_add_u32 s33, s33, s{IDX}")
    a("s_lshl_b32 s33, s33, 7")
    a("v_lshlrev_b32 v4, 4, v1             ; lane*16")
    a("s_cmp_ge_u32 s20, 4")
    a("s_cbranch_scc1 GP_KV")
    XR, XV, HP = 8, 40, 112
    a("s_lshl_b32 s28, s20, 2")
    a("s_add_u32 s36, s35, s28")
    a("s_lshl_b32 s37, s36, 11")
    a("s_add_u32 s38, s37, 4096")
    for k in range(8):
        a(f"buffer_load_dwordx4 {vr(XR+4*k,4)}, v4, s[8:11], s{37 + k//4} offen offset:{(k%4)*1024}{NTX}")
    srd(a, 16, P['gw'], SZ['gw'])
    srd(a, 44, P['b1'], SZ['b1'])
    a("s_lshr_b32 s27, s20, 1             ; wr")
    a("s_mul_i32 s29, s22, 14")
    a("s_lshl_b32 s30, s27, 3")
    a("s_add_u32 s30, s30, s29")
    a("s_add_u32 s31, s29, 6")
    a("s_add_u32 s31, s31, s27")
    a("s_lshl_b32 s57, s30, 5")
    a("s_lshl_b32 s58, s31, 5")
    a("v_lshlrev_b32 v153, 3, v3")
    a("s_lshl_b32 s28, s27, 5")
    a("v_xor_b32 v144, s28, v4")
    a("s_lshl_b32 s29, s20, 13")
    a(f"s_add_u32 s29, s29, {LH}")
    a("v_add_u32 v144, s29, v144")
    for i in range(1, 4): a(f"v_xor_b32 v{144+i}, {64*i}, v144")
    a("v_lshrrev_b32 v5, 2, v2             ; r")
    a("v_and_b32 v6, 1, v3")
    a("v_lshrrev_b32 v7, 1, v3")
    a("v_lshl_add_u32 v148, v6, 3, v5")
    a("v_lshlrev_b32 v148, 11, v148")
    a("v_lshl_add_u32 v148, v5, 6, v148")
    a("v_xor_b32 v149, v6, v7")
    a("v_lshl_add_u32 v148, v149, 5, v148")
    a("v_and_b32 v149, 3, v1")
    a("v_lshl_add_u32 v148, v149, 3, v148")
    a("s_lshl_b32 s28, s20, 9")
    a(f"s_add_u32 s28, s28, {LH}")
    a("v_add_u32 v148, s28, v148")
    for p in range(1, 4): a(f"v_xor_b32 v{148+p}, {p*64}, v148")
    a("v_lshlrev_b32 v152, 10, v7")
    a("v_lshl_add_u32 v152, v6, 8, v152")
    a("v_lshl_add_u32 v152, v2, 4, v152")
    a("s_lshl_b32 s40, s20, 20")
    a("s_lshr_b32 s29, s35, 5")
    a("s_lshl_b32 s29, s29, 13")
    a("s_add_u32 s40, s40, s29")
    a("s_and_b32 s29, s35, 31")
    a("s_lshl_b32 s29, s29, 5")
    a("s_add_u32 s40, s40, s29")
    a(f"s_add_u32 s40, s40, {WS_HT}")
    a("s_add_u32 s41, s40, 4096")
    a("s_add_u32 s42, s40, 524288")
    a("s_add_u32 s43, s42, 4096")
    a("s_lshl_b32 s39, s36, 2")
    a(f"s_add_u32 s39, s39, {WS_G}")
    a("v_lshlrev_b32 v154, 2, v1")
    A0 = 104
    for r in range(4):
        a(f"s_waitcnt vmcnt({6-2*r})")
        if r == 0: stamp(a, 1)
        X = XV + 16*r
        for i in range(8):
            a(f"v_lshlrev_b32 v{X+2*i}, 16, v{XR+8*r+i}")
            a(f"v_and_b32 v{X+2*i+1}, 0xffff0000, v{XR+8*r+i}")
    for r in range(4): a(f"v_pk_add_f32 {vr(A0+2*r,2)}, {vr(XV+16*r,2)}, {vr(XV+16*r+2,2)}")
    for i in range(4, 16, 2):
        for r in range(4): a(f"v_pk_add_f32 {vr(A0+2*r,2)}, {vr(A0+2*r,2)}, {vr(XV+16*r+i,2)}")
    for r in range(4): a(f"v_add_f32 v{A0+2*r}, v{A0+2*r}, v{A0+2*r+1}")
    wave_reduce(a, [A0+2*r for r in range(4)])
    a("s_nop 0")
    for r in range(4): a(f"v_readlane_b32 s{28+r}, v{A0+2*r}, 63")
    a(f"v_mov_b32 v5, {fhex(-1.0/1024)}")
    a("s_nop 0")
    for r in range(4): a(f"v_mul_f32 v{A0+2*r}, s{28+r}, v5")
    for r in range(4): a(f"v_mov_b32 v{A0+2*r+1}, v{A0+2*r}")
    for i in range(0, 16, 2):
        for r in range(4): a(f"v_pk_add_f32 {vr(XV+16*r+i,2)}, {vr(XV+16*r+i,2)}, {vr(A0+2*r,2)}")
    for r in range(4): a(f"v_pk_mul_f32 {vr(A0+2*r,2)}, {vr(XV+16*r,2)}, {vr(XV+16*r,2)}")
    for i in range(2, 16, 2):
        for r in range(4): a(f"v_pk_fma_f32 {vr(A0+2*r,2)}, {vr(XV+16*r+i,2)}, {vr(XV+16*r+i,2)}, {vr(A0+2*r,2)}")
    for r in range(4): a(f"v_add_f32 v{A0+2*r}, v{A0+2*r}, v{A0+2*r+1}")
    wave_reduce(a, [A0+2*r for r in range(4)])
    a("s_nop 0")
    for r in range(4): a(f"v_readlane_b32 s{28+r}, v{A0+2*r}, 63")
    a(f"v_mov_b32 v5, {fhex(1.0/1024)}")
    a(f"v_mov_b32 v6, {fhex(1e-5)}")
    for r in range(4): a(f"v_fma_f32 v{A0+2*r}, s{28+r}, v5, v6")
    for r in range(4): a(f"v_rsq_f32 v{A0+2*r}, v{A0+2*r}")
    for r in range(4): a(f"v_mov_b32 v{A0+2*r+1}, v{A0+2*r}")
    for r in range(4):
        for i in range(0, 16, 2): a(f"v_pk_mul_f32 {vr(XV+16*r+i,2)}, {vr(XV+16*r+i,2)}, {vr(A0+2*r,2)}")
        for i in range(8): a(f"v_cvt_pk_bf16_f32 v{HP+8*r+i}, v{XV+16*r+2*i}, v{XV+16*r+2*i+1}")
        a(f"ds_write_b128 v{144+r}, {vr(HP+8*r,4)} offset:{r*2048}")
        a(f"ds_write_b128 v{144+r}, {vr(HP+8*r+4,4)} offset:{r*2048+1024}")
    a("s_waitcnt lgkmcnt(0)")
    tag_finish(a)
    stamp(a, 2)
    a("s_barrier")
    stamp(a, 20)
    for k in range(8):
        a(f"ds_read_b64_tr_b16 {vr(HP+4*k,2)}, v{148+k%4} offset:{(k//4)*256}")
        a(f"ds_read_b64_tr_b16 {vr(HP+2+4*k,2)}, v{148+k%4} offset:{(k//4)*256 + 4*2048}")
    GW = 156
    a(f"buffer_load_dwordx4 {vr(GW,4)}, v4, s[16:19], 0 offen")
    a(f"buffer_load_dwordx4 {vr(GW+4,4)}, v4, s[16:19], 0 offen offset:1024")
    for k in range(8):
        a(f"s_waitcnt lgkmcnt({14-2*k})")
        a(f"buffer_store_dwordx4 {vr(HP+4*k,4)}, v152, s[12:15], s{40 + k//2} offen offset:{(k%2)*2048}{SC}")
    for i in range(6):
        a(f"buffer_load_dwordx2 {vr(BIAS+2*i,2)}, v153, s[44:47], s57 offen offset:{i*32}")
    a(f"buffer_load_dwordx2 {vr(BIAS+12,2)}, v153, s[44:47], s58 offen")
    stamp(a, 21)
    a("s_waitcnt vmcnt(0)")
    stamp(a, 3)
    a("s_barrier")
    stamp(a, 22)
    a("s_cmp_eq_u32 s20, 0")
    a("s_cbranch_scc0 GP_NR")
    PR, PK = 40, 112
    a(f"v_add_u32 v5, {LX}, v4")
    for w in range(4):
        for q in range(4):
            a(f"ds_read_b128 {vr(PR + w*16 + q*4, 4)}, v5 offset:{w*16384 + q*1024}")
    a("s_lshr_b32 s28, s34, 5              ; kt")
    a("s_lshl_b32 s29, s28, 12")
    a("s_lshl_b32 s30, s26, 11")
    a("s_add_u32 s29, s29, s30")
    a(f"s_add_u32 s29, s29, {WS_KV}")
    a("s_waitcnt lgkmcnt(0)")
    for st in (1, 2):
        for w in range(0, 4, 2 * st):
            for j in range(0, 16, 2):
                a(f"v_pk_add_f32 {vr(PR+w*16+j,2)}, {vr(PR+w*16+j,2)}, {vr(PR+(w+st)*16+j,2)}")
    for j in range(8): a(f"v_cvt_pk_bf16_f32 v{PK+j}, v{PR+2*j}, v{PR+2*j+1}")
    a(f"buffer_store_dwordx4 {vr(PK,4)}, v4, s[12:15], s29 offen{SC}")
    a(f"buffer_store_dwordx4 {vr(PK+4,4)}, v4, s[12:15], s29 offen offset:1024{SC}")
    a("s_cmp_eq_u32 s26, 1")
    a("s_cbranch_scc1 GP_NK")
    a("v_mov_b32 v6, 0")
    for j in range(8): a(f"v_dot2_f32_bf16 v6, v{PK+j}, v{PK+j}, v6")
    a("s_nop 2")
    a("v_mov_b32 v7, v6")
    a("s_nop 1")
    a("v_permlane32_swap_b32 v6, v7")
    a("v_add_f32 v6, v6, v7")
    wave_reduce(a, [6], op="v_max_f32")
    a("s_nop 0")
    a("v_readlane_b32 s30, v6, 63")
    a("s_lshl_b32 s28, s28, 7")
    a(f"s_add_u32 s28, s28, {WS_KN}")
    a("v_mov_b32 v6, s30")
    a("s_mov_b32 exec_hi, 0")
    a(f"buffer_store_dword v6, v154, s[12:15], s28 offen{SC}")
    a("s_mov_b32 exec_hi, -1")
    a.label("GP_NK")
    a("s_barrier")
    a(f"s_add_u32 s28, s33, {FL_F1B}")
    a("s_waitcnt vmcnt(0)")
    flag_store(a, 6, 7, "s28")
    stamp(a, 23)
    a("s_branch GP_G")
    a.label("GP_NR")
    a("s_barrier")
    a.label("GP_G")
    GV = XV
    for i in range(8):
        a(f"v_lshlrev_b32 v{GV+2*i}, 16, v{GW+i}")
        a(f"v_and_b32 v{GV+2*i+1}, 0xffff0000, v{GW+i}")
    for r in range(4):
        T = GV + 16 + 16*(r % 2)
        for i in range(8):
            a(f"v_lshlrev_b32 v{T+2*i}, 16, v{XR+8*r+i}")
            a(f"v_and_b32 v{T+2*i+1}, 0xffff0000, v{XR+8*r+i}")
        a(f"v_pk_mul_f32 {vr(A0+2*r,2)}, {vr(T,2)}, {vr(GV,2)}")
        for i in range(2, 16, 2): a(f"v_pk_fma_f32 {vr(A0+2*r,2)}, {vr(T+i,2)}, {vr(GV+i,2)}, {vr(A0+2*r,2)}")
    for r in range(4): a(f"v_add_f32 v{A0+2*r}, v{A0+2*r}, v{A0+2*r+1}")
    wave_reduce(a, [A0+2*r for r in range(4)])
    a("s_nop 0")
    for r in range(4): a(f"v_readlane_b32 s{28+r}, v{A0+2*r}, 63")
    a("v_mov_b32 v5, 0")
    a("s_nop 0")
    for r in range(4): a(f"v_writelane_b32 v5, s{28+r}, {r}")
    a(f"v_mul_f32 v5, {fhex(-LOG2E)}, v5")
    a("v_exp_f32 v5, v5")
    a("s_nop 0")
    a("v_add_f32 v5, 1.0, v5")
    a("v_rcp_f32 v5, v5")
    a("s_mov_b64 exec, 15")
    a(f"buffer_store_dword v5, v154, s[12:15], s39 offen{SC}")
    a("s_mov_b64 exec, -1")
    a("s_branch GP_DONE")
    a.label("GP_KV")
    a("s_cmp_eq_u32 s26, 1")
    a(f"s_cselect_b32 s44, s{P['wv']}, s{P['wk']}")
    a(f"s_cselect_b32 s45, s{P['wv']+1}, s{P['wk']+1}")
    a("s_and_b32 s45, s45, 0xffff")
    a(f"s_mov_b32 s46, 0x{SZ['wk']:x}")
    a("s_mov_b32 s47, 0x20000")
    a("s_and_b32 s52, s20, 3               ; kw")
    a(f"s_lshr_b32 s28, s{IDX}, 1")
    a("s_lshl_b32 s28, s28, 2")
    a("s_add_u32 s28, s28, s52")
    a("s_lshl_b32 s28, s28, 11")
    a("v_lshlrev_b32 v5, 7, v1")
    srd(a, 16, P['gw'], SZ['gw'])
    srd(a, 48, P['b1'], SZ['b1'])
    a("s_lshl_b32 s29, s52, 9")
    a("s_mul_i32 s30, s22, 448")
    a("s_lshl_b32 s31, s52, 7")
    a("s_add_u32 s30, s30, s31")
    a("s_mov_b64 exec, 0xffff")
    a("buffer_load_dword v254, v5, s[44:47], s28 offen")
    a("s_mov_b64 exec, 15")
    a("buffer_load_dword v254, v5, s[16:19], s29 offen")
    a("s_mov_b64 exec, 1")
    a("buffer_load_dword v254, v5, s[48:51], s30 offen")
    a("s_mov_b64 exec, -1")
    srd(a, 48, P['w1'], SZ['w1'])
    mlp1_loader_setup(a)
    XF, WF, AC, XD = 96, 32, 64, 128
    a("s_lshl_b32 s39, s52, 14             ; kw*16384")
    a("s_lshl_b32 s38, s52, 9")
    a("v_add_u32 v5, s34, v3")
    a("v_lshlrev_b32 v5, 11, v5")
    a("v_add_u32 v5, s38, v5")
    a("v_xor_b32 v6, v2, v3")
    for i in range(8):
        a(f"v_xor_b32 v7, {(4*i) & 15}, v6")
        a(f"v_lshl_add_u32 v{XD+i}, v7, 4, v5")
        a(f"v_add_u32 v{XD+i}, {i*4*2048 - (i%4)*1024}, v{XD+i}")
    a("v_and_b32 v5, 31, v1")
    a("v_lshrrev_b32 v6, 5, v1")
    a("v_xor_b32 v6, v6, v2")
    a("v_lshlrev_b32 v5, 8, v5")
    a("v_lshl_add_u32 v5, v6, 4, v5")
    a(f"s_add_u32 s31, s39, {LX}")
    a("v_add_u32 v5, s31, v5")
    for t in range(8): a(f"v_xor_b32 v{XD+8+t}, {t*32}, v5")
    a("v_lshrrev_b32 v5, 2, v2")
    a("v_lshrrev_b32 v7, 1, v3")
    a("v_lshl_add_u32 v150, v7, 3, v5")
    a("v_lshlrev_b32 v150, 6, v150")
    a("v_and_b32 v6, 1, v3")
    a("v_lshl_add_u32 v150, v6, 5, v150")
    a("v_and_b32 v6, 3, v1")
    a("v_lshl_add_u32 v150, v6, 3, v150")
    a("v_add_u32 v150, s39, v150")
    a("v_add_u32 v151, s31, v4")
    a("s_movk_i32 s41, 256")
    a("s_mov_b32 s40, s39")
    a(f"s_mov_b32 s42, {256*7168}")
    a("s_waitcnt vmcnt(0) lgkmcnt(0)")
    tag_finish(a)
    stamp(a, 1)
    for h in range(4):
        a(f"s_add_u32 m0, s40, {LW}")
        a("s_nop 0")
        for i in range(4): a(f"buffer_load_dwordx4 v4, s[44:47], s40 offen offset:{i*1024} lds")
        a("s_add_u32 s40, s40, 4096")
    for h in range(4):
        a(f"s_add_u32 m0, s31, {h*4096}")
        a("s_nop 0")
        for i in range(4): a(f"buffer_load_dwordx4 v{XD+4*(h%2)+i}, s[8:11], {'0' if h < 2 else 's41'} offen offset:{i*1024} lds")
    stamp(a, 2)
    a("s_barrier")
    a("s_waitcnt vmcnt(0)")
    stamp(a, 21)
    for h in range(2):
        for t in range(8):
            a(f"ds_read_b128 {vr(XF+4*t,4)}, v{XD+8+t} offset:{h*8192}")
            a(f"ds_read_b64_tr_b16 {vr(WF+4*t,2)}, v150 offset:{h*8192 + t*1024}")
            a(f"ds_read_b64_tr_b16 {vr(WF+4*t+2,2)}, v150 offset:{h*8192 + t*1024+256}")
        a("s_cmp_eq_u32 s26, 1")
        a("s_waitcnt lgkmcnt(0)")
        a(f"s_cbranch_scc1 GP_V{h}")
        for t in range(8):
            a(f"{M32} {vr(AC,16)}, {vr(WF+4*t,4)}, {vr(XF+4*t,4)}, {'0' if t + h == 0 else vr(AC,16)}")
        a(f"s_branch GP_J{h}")
        a.label(f"GP_V{h}")
        for t in range(8):
            a(f"{M32} {vr(AC,16)}, {vr(XF+4*t,4)}, {vr(WF+4*t,4)}, {'0' if t + h == 0 else vr(AC,16)}")
        a.label(f"GP_J{h}")
    a("s_nop 11")
    for q in range(4): a(f"ds_write_b128 v151, {vr(AC+4*q,4)} offset:{q*1024}")
    a("s_waitcnt lgkmcnt(0)")
    stamp(a, 3)
    a("s_barrier")
    stamp(a, 22)
    a("s_cmp_eq_u32 s20, 4")
    a("s_cbranch_scc0 GP_NF")
    a(f"s_add_u32 s28, s33, {FL_F1}")
    flag_store(a, 6, 7, "s28")
    a.label("GP_NF")
    a("s_barrier")
    a(f"buffer_load_dword v254, v{L1F+1}, s[48:51], 0 offen")
    a(f"buffer_load_dword v254, v{L1F+1}, s[48:51], s42 offen")
    a.label("GP_DONE")

M1_SLOT, M1_R, M1_NS, M1_ACC = 49152, 3, 32, 128
M1_SET = [(16, 44), (60, 88)]
def m1_acc(i, j): return M1_ACC + (i * 4 + j) * 4

def mlp1_loader_setup(a):
    a("s_and_b32 s52, s20, 3              ; lw")
    a("v_lshrrev_b32 v5, 3, v1            ; l/8")
    a("v_and_b32 v6, 7, v1                ; l%8")
    a("v_and_b32 v7, 2, v5")
    a("v_xor_b32 v6, v6, v7")
    a("s_movk_i32 s28, 7168")
    a("v_mul_lo_u32 v5, v5, s28")
    a("s_mul_i32 s28, s22, 448")
    a("s_and_b32 s29, s22, 1")
    a("s_lshl_b32 s29, s29, 6")
    a("s_sub_u32 s28, s28, s29")
    a("s_lshl_b32 s29, s52, 7")
    a("s_add_u32 s28, s28, s29")
    a("v_add_u32 v5, s28, v5")
    a("v_lshl_add_u32 v7, v6, 4, v5       ; even i")
    a("v_xor_b32 v6, 4, v6")
    a("v_lshl_add_u32 v6, v6, 4, v5       ; odd i")
    for i in range(8):
        a(f"v_add_u32 v{L1T+i}, {i*8*7168 - (i%4)*1024}, v{7 if i%2==0 else 6}")
    a("s_lshl_b32 s28, s21, 19")
    a("s_lshl_b32 s29, s52, 12")
    a("s_add_u32 s28, s28, s29")
    a(f"s_add_u32 s28, s28, {WS_HT}")
    a(f"v_lshl_add_u32 v{L1F}, v1, 4, s28")
    a(f"s_lshl_b32 s28, s{IDX}, 2")
    a("s_add_u32 s28, s28, s52")
    a("s_lshl_b32 s28, s28, 2")
    a("v_add_u32 v5, s28, v3")
    a("s_movk_i32 s28, 7168")
    a("v_mul_lo_u32 v5, v5, s28")
    a("v_min_u32 v6, 13, v2")
    a("v_lshl_add_u32 v5, v6, 7, v5")
    a(f"s_lshr_b32 s28, s{XCD}, 1")
    a("s_mul_i32 s28, s28, 1792")
    a(f"v_add_u32 v{L1F+1}, s28, v5")
    a("s_lshl_b32 s54, s52, 13")
    a("s_add_u32 s55, s29, 32768")

def mlp1_loader(a):
    n = 12
    a("s_mov_b32 s24, 0")
    a("s_mov_b32 s25, 0")
    a("s_mov_b32 s26, 0")
    a("s_mov_b32 m0, s54")
    a("s_add_u32 s56, s54, 4096")
    def issueT():
        for i in range(4): a(f"buffer_load_dwordx4 v{L1T+i}, s[48:51], s25 offen offset:{i*1024}{NTW} lds")
        a("s_add_u32 m0, s24, s56")
        a("s_nop 0")
        for i in range(4, 8): a(f"buffer_load_dwordx4 v{L1T+i}, s[48:51], s25 offen offset:{(i%4)*1024}{NTW} lds")
        a("s_add_u32 m0, s24, s55")
        a(f"s_add_u32 s25, s25, {64*7168}")
    def issueF():
        adv = slot_advance(24, M1_SLOT, M1_R)
        for i in range(4):
            a(f"buffer_load_dwordx4 v{L1F}, s[12:15], s26 offen offset:{i*1024}{SC} lds")
            if i < 3: a(adv[i])
        a("s_add_u32 s26, s26, 16384")
        a("s_add_u32 m0, s24, s54")
    issueT()
    a("s_barrier")
    stamp(a, 4)
    issueF()
    a("s_nop 0")
    issueT(); issueF()
    a(f"s_waitcnt vmcnt({n})")
    a("s_barrier")
    a("s_cmp_eq_u32 s20, 4")
    a("s_cbranch_scc0 M1_NGF")
    a(f"s_add_u32 s28, s33, {FL_F1C}")
    flag_store(a, 16, 17, "s28")
    a.label("M1_NGF")
    issueT(); issueF()
    a(f"s_waitcnt vmcnt({n})")
    a("s_barrier")
    issueT(); issueF()
    UN = 4
    a(f"s_mov_b32 s23, {(M1_NS - M1_R - 1) // UN}")
    a(".p2align 6")
    a.label("M1_LDL")
    for u in range(UN):
        a(f"s_waitcnt vmcnt({(M1_R-2)*n})")
        a("s_barrier")
        issueT(); issueF()
    if PROF["on"]:
        a("s_memtime s[94:95]")
        a("s_memrealtime s[96:97]")
        a("s_lshl_b32 s60, s23, 1")
        a("s_add_u32 s60, s60, 46")
        a("s_add_u32 s61, s60, 1")
        a("s_waitcnt lgkmcnt(0)")
        a("v_writelane_b32 v255, s94, s60" if False else "s_mov_b32 s62, m0")
        a("s_mov_b32 m0, s60")
        a("v_writelane_b32 v255, s94, m0")
        a("s_mov_b32 m0, s61")
        a("v_writelane_b32 v255, s96, m0")
        a("s_mov_b32 m0, s62")
    a("s_sub_u32 s23, s23, 1")
    a("s_cmp_lg_u32 s23, 0")
    a("s_cbranch_scc1 M1_LDL")
    for i in range(M1_NS - M1_R, M1_NS - 1):
        left = (M1_NS - 1) - (i + 1)
        a(f"s_waitcnt vmcnt({left*n})")
        a("s_barrier")
    a("s_barrier")

def mlp1_compute(a):
    a("s_lshr_b32 s27, s20, 1             ; wr")
    a("s_and_b32 s28, s20, 1              ; wc")
    a("s_mul_i32 s29, s22, 14")
    a("s_lshl_b32 s30, s27, 3")
    a("s_add_u32 s30, s30, s29")
    a("s_add_u32 s31, s29, 6")
    a("s_add_u32 s31, s31, s27")
    a("v_lshrrev_b32 v5, 2, v2            ; r")
    a("v_lshl_add_u32 v6, v3, 3, v5       ; 8g+r")
    a("v_lshlrev_b32 v6, 7, v6")
    a("v_and_b32 v7, 3, v1")
    a("v_lshl_add_u32 v6, v7, 3, v6       ; + c*8")
    a("v_lshrrev_b32 v5, 1, v5")
    a("v_and_b32 v7, 1, v3")
    a("v_lshl_add_u32 v5, v7, 1, v5       ; f")
    a("v_lshl_add_u32 v6, v5, 5, v6")
    a("s_and_b32 s34, s22, 1")
    a("s_lshl_b32 s34, s34, 1")
    a("s_lshl_b32 s35, s27, 3")
    a("s_add_u32 s35, s35, s34            ; jj0")
    a("s_add_u32 s36, s34, 6")
    a("s_add_u32 s36, s36, s27            ; jj6")
    for i in range(5):
        if i < 4: a(f"s_add_u32 s37, s35, {i}")
        else: a("s_mov_b32 s37, s36")
        a("s_and_b32 s38, s37, 3")
        a("s_lshl_b32 s38, s38, 5")
        a("s_lshr_b32 s37, s37, 2")
        a("s_lshl_b32 s37, s37, 13")
        a(f"v_xor_b32 v{10+i}, s38, v6")
        a(f"v_add_u32 v{10+i}, s37, v{10+i}")
    a("s_lshl_b32 s37, s28, 12")
    a("s_add_u32 s37, s37, 32768")
    a("v_lshl_add_u32 v15, v1, 4, s37")
    for i in range(7):
        b = m1_acc(i, 0)
        a(f"v_lshlrev_b32 v{b}, 16, v{BIAS+2*i}")
        a(f"v_and_b32 v{b+1}, 0xffff0000, v{BIAS+2*i}")
        a(f"v_lshlrev_b32 v{b+2}, 16, v{BIAS+1+2*i}")
        a(f"v_and_b32 v{b+3}, 0xffff0000, v{BIAS+1+2*i}")
        for j in range(1, 4):
            for r in range(4): a(f"v_mov_b32 v{m1_acc(i,j)+r}, v{b+r}")
    for i in range(6): a(f"v_mov_b32 v{4+i}, v{10+i}")
    a("s_mov_b32 s24, 0")
    def reads(st, t):
        A, B = M1_SET[st]
        o = []
        for j in range(4):
            o.append(f"ds_read_b128 {vr(B+4*j,4)}, v9 offset:{t*8192 + j*1024}")
        for i in range(7):
            reg = 4 + (i % 4) if i < 6 else 8
            off = (8192 if i in (4, 5) else 0) + t * 4096
            o.append(f"ds_read_b64_tr_b16 {vr(A+4*i,2)}, v{reg} offset:{off}")
            o.append(f"ds_read_b64_tr_b16 {vr(A+4*i+2,2)}, v{reg} offset:{off+512}")
        return o
    def mfmas(st):
        A, B = M1_SET[st]
        return [f"{M16} {vr(m1_acc(i,j),4)}, {vr(A+4*i,4)}, {vr(B+4*j,4)}, {vr(m1_acc(i,j),4)}"
                for i in range(7) for j in range(4)]
    upd = slot_advance(24, M1_SLOT, M1_R) + [f"v_add_u32 v{4+i}, s24, v{10+i}" for i in range(6)]
    def stage(last=False):
        for x in interleave(mfmas(0), reads(1, 1) + ([] if last else upd), 0, 27 if not last else 20): a(x)
        a("s_waitcnt lgkmcnt(0)")
        a("s_barrier")
        seq = interleave(mfmas(1), reads(0, 0), 0, 20) if not last else mfmas(1)
        for x in seq: a(x)
        if not last: a("s_waitcnt lgkmcnt(0)")
    a("s_cmp_eq_u32 s20, 1")
    a("s_cbranch_scc0 M1_NP")
    a(f"s_mov_b32 s60, {FL_F1}")
    a(f"s_mov_b32 s61, {FL_F1 + 8192}")
    a("v_lshlrev_b32 v16, 7, v1")
    poll(a, [(16, "s60", 0), (16, "s61", 0)], 17, "M1P", sleep=4)
    a.label("M1_NP")
    stamp(a, 24)
    a("s_barrier")
    a("s_waitcnt vmcnt(0)")
    stamp(a, 4)
    a("s_barrier")
    stamp(a, 5)
    for x in reads(0, 0): a(x)
    a(f"s_mov_b32 s23, {(M1_NS-2)//2}")
    a("s_waitcnt lgkmcnt(0)")
    a(".p2align 6")
    a.label("M1_CL")
    stage(); stage()
    a("s_sub_u32 s23, s23, 1")
    a("s_cmp_lg_u32 s23, 0")
    a("s_cbranch_scc1 M1_CL")
    stage(); stage(last=True)

def mlp1_epilogue(a):
    c1 = -2.0 * 0.7978845608028654 * LOG2E
    c2 = c1 * 0.044715
    a(f"v_mov_b32 v4, {fhex(c1)}")
    a(f"v_mov_b32 v5, {fhex(c1)}")
    a(f"v_mov_b32 v6, {fhex(c2)}")
    a(f"v_mov_b32 v7, {fhex(c2)}")
    a(f"s_mul_i32 s32, s21, {112*8192}")
    a("s_lshl_b32 s33, s28, 12")
    a("s_add_u32 s32, s32, s33")
    a(f"s_add_u32 s32, s32, {WS_U}")
    a("s_lshr_b32 s33, s30, 1")
    a("s_lshl_b32 s33, s33, 13")
    a("s_add_u32 s33, s33, s32")
    a("s_lshr_b32 s34, s31, 1")
    a("s_lshl_b32 s34, s34, 13")
    a("s_add_u32 s34, s34, s32")
    a("s_lshl_b32 s35, s27, 9")
    a("s_add_u32 s34, s34, s35")
    a("v_lshlrev_b32 v8, 4, v1")
    a("v_lshrrev_b32 v11, 1, v3")
    a("v_lshlrev_b32 v11, 8, v11")
    a("v_lshl_add_u32 v11, v2, 4, v11")
    a("v_and_b32 v12, 1, v3")
    a("v_lshl_add_u32 v11, v12, 3, v11    ; (16(g>>1) + c)*16 + (g&1)*8")
    a("s_lshl_b32 s35, s22, 2")
    a("s_add_u32 s35, s35, s20")
    a("s_lshl_b32 s35, s35, 7")
    a("s_lshl_b32 s36, s21, 13")
    a("s_add_u32 s35, s35, s36")
    a(f"s_add_u32 s35, s35, {FL_F2}")
    a("s_add_u32 s36, s35, 65536")
    a("v_mov_b32 v9, 0")
    T = 16
    def gelu_block(accs, tb, ob):
        n = len(accs)
        pr = [(accs[q] + 2 * h, tb + 4 * q + 2 * h) for q in range(n) for h in range(2)]
        for u, t in pr: a(f"v_pk_mul_f32 {vr(t,2)}, {vr(u,2)}, {vr(u,2)}")
        for u, t in pr: a(f"v_pk_fma_f32 {vr(t,2)}, {vr(t,2)}, v[6:7], v[4:5]")
        for u, t in pr: a(f"v_pk_mul_f32 {vr(t,2)}, {vr(t,2)}, {vr(u,2)}")
        for u, t in pr:
            a(f"v_exp_f32 v{t}, v{t}"); a(f"v_exp_f32 v{t+1}, v{t+1}")
        for u, t in pr: a(f"v_pk_add_f32 {vr(t,2)}, {vr(t,2)}, 1.0 op_sel_hi:[1,0]")
        for u, t in pr:
            a(f"v_rcp_f32 v{t}, v{t}"); a(f"v_rcp_f32 v{t+1}, v{t+1}")
        for u, t in pr: a(f"v_pk_mul_f32 {vr(t,2)}, {vr(t,2)}, {vr(u,2)}")
        for k, (u, t) in enumerate(pr): a(f"v_cvt_pk_bf16_f32 v{ob+k}, v{t}, v{t+1}")
    blk = 0
    for p in range(3):
        for j in range(0, 4, 2):
            ob = 48 + (blk % 4) * 8
            gelu_block([m1_acc(2*p, j), m1_acc(2*p+1, j), m1_acc(2*p, j+1), m1_acc(2*p+1, j+1)], T, ob)
            if blk == env("F2_AT", 3):
                a(f"s_waitcnt vmcnt({2*(blk-2)})")
                flag_store(a, 9, 10, "s35", "1")
            a(f"buffer_store_dwordx4 {vr(ob,4)}, v8, s[12:15], s33 offen offset:{j*1024}{SC}")
            a(f"buffer_store_dwordx4 {vr(ob+4,4)}, v8, s[12:15], s33 offen offset:{(j+1)*1024}{SC}")
            blk += 1
        a("s_add_u32 s33, s33, 8192")
    ob = 48 + (blk % 4) * 8
    gelu_block([m1_acc(6, j) for j in range(4)], T, ob)
    for j in range(4):
        a(f"buffer_store_dwordx2 {vr(ob+2*j,2)}, v11, s[12:15], s34 offen offset:{j*1024}{SC}")

M2_SLOT = 32768
G2 = {
    0: dict(NS=16, R=4, slot0=0, sets=[(176, 192), (208, 224)], acc=[80 + 4*k for k in range(8)] + [144 + 4*k for k in range(8)]),
    1: dict(NS=56, R=env("M2_R", 4), slot0=0, sets=[(16, 32), (48, 64)], acc=[128 + 4*k for k in range(16)]),
    2: dict(NS=16, R=5, slot0=2, sets=[(16, 32), (48, 64)], acc=[128 + 4*k for k in range(16)]),
}
def g2acc(part, i, j): return G2[part]["acc"][i * 4 + j]

def t_offsets(a, dst, sh, colreg, natural):
    a("v_lshrrev_b32 v4, 3, v1            ; l/8")
    a("v_and_b32 v5, 7, v1")
    a(f"v_and_b32 v6, {2 if natural else 6}, v4")
    a("v_xor_b32 v5, v5, v6")
    a("s_lshl_b32 s60, s29, 7")
    a(f"s_lshl_b32 s61, s{colreg}, 8")
    a("s_add_u32 s60, s60, s61")
    a(f"v_lshlrev_b32 v4, {sh}, v4")
    a("v_add_u32 v4, s60, v4")
    a("v_lshl_add_u32 v6, v5, 4, v4")
    if natural:
        a("v_xor_b32 v5, 4, v5")
        a("v_lshl_add_u32 v5, v5, 4, v4")
    for i in range(4): a(f"v_add_u32 v{dst+i}, {i*((8 << sh)-1024)}, v{5 if (natural and i & 1) else 6}")

def loader_ids(a):
    a("s_and_b32 s27, s20, 3              ; lw")
    a("s_lshr_b32 s28, s27, 1")
    a("s_and_b32 s29, s27, 1              ; cb")

class Gate:
    def __init__(self, a, pfx): self.a, self.pfx, self.tail, self.n = a, pfx, [], 0
    def check(self):
        a = self.a; self.n += 1
        L = f"{self.pfx}G{self.n}"
        a("s_andn2_b64 s[42:43], s[38:39], s[40:41]")
        a(f"s_cbranch_scc1 {L}_P")
        a.label(f"{L}_D")
        self.tail.append(("poll", L))
    def refresh_issue(self):
        a = self.a; self.n += 1
        L = f"{self.pfx}R{self.n}"
        a("s_andn2_b64 s[52:53], s[44:45], s[40:41]")
        a(f"s_cbranch_scc1 {L}_P")
        a.label(f"{L}_D")
        self.tail.append(("ri", L))
    def refresh_take(self):
        a = self.a; self.n += 1
        L = f"{self.pfx}R{self.n}"
        a("s_cmp_lg_u64 s[52:53], 0")
        a(f"s_cbranch_scc1 {L}_P")
        a.label(f"{L}_D")
        self.tail.append(("rt", L))
    def emit(self):
        a = self.a
        a(f"s_branch {self.pfx}_GEND")
        for kind, L in self.tail:
            a.label(f"{L}_P")
            if kind == "poll":
                a("s_mov_b32 s99, 0x40000")
                a.label(f"{L}_C")
                a("s_andn2_b64 exec, s[44:45], s[40:41]")
                a("buffer_load_dword v17, v16, s[12:15], s34 offen sc1")
                a("s_waitcnt vmcnt(0)")
                a(f"v_cmp_eq_u32 vcc, s{TAG}, v17")
                a("s_mov_b64 exec, -1")
                a("s_or_b64 s[40:41], s[40:41], vcc")
                a("s_andn2_b64 s[42:43], s[38:39], s[40:41]")
                a(f"s_cbranch_scc0 {L}_D")
                a(f"s_sleep {env('POLL_SLEEP', 3)}")
                a("s_sub_u32 s99, s99, 1")
                a("s_cmp_lg_u32 s99, 0")
                a(f"s_cbranch_scc1 {L}_C")
            elif kind == "sw":
                for i in range(4): a(f"v_mov_b32 v{8+i}, v{20+i}")
            elif kind == "ri":
                a("s_mov_b64 exec, s[52:53]")
                a("buffer_load_dword v18, v16, s[12:15], s34 offen sc1")
                a("s_mov_b64 exec, -1")
            else:
                a("s_mov_b64 exec, s[52:53]")
                a(f"v_cmp_eq_u32 vcc, s{TAG}, v18")
                a("s_mov_b64 exec, -1")
                a("s_or_b64 s[40:41], s[40:41], vcc")
            a(f"s_branch {L}_D")
        a.label(f"{self.pfx}_GEND")

def ring_issue(a, part, sal, more, tmod, fsrd, fregs, fmod, post, mid=None):
    k = 0
    per = (len(sal) + 3) // 4
    for i in range(4):
        a(f"buffer_load_dwordx4 v{8+i}, s[8:11], s25 offen offset:{i*1024}{tmod} lds")
        if i == 3: a("s_mov_b32 m0, s50")
        for x in sal[k:k+per]: a(x)
        if i == 3 and not sal[k:k+per]: a("s_nop 0")
        k += per
    if mid: mid()
    for i in range(4):
        a(f"buffer_load_dwordx4 v{fregs[i]}, s[{fsrd}:{fsrd+3}], s26 offen offset:{i*1024}{fmod} lds")
        if more and i == 0:
            for x in slot_advance(24, M2_SLOT, G2[part]["R"]): a(x)
            a("s_add_u32 s50, s24, s31")
        if more and i == 1: post(0)
    if more: post(1)

def lds_offs(a):
    a("s_lshl_b32 s30, s29, 13")
    a("s_lshl_b32 s31, s28, 12")
    a("s_add_u32 s30, s30, s31")
    a("s_lshl_b32 s31, s27, 12")
    a("s_add_u32 s31, s31, 16384")

def mlp2_loader(a):
    part = 1; NS = 56; R = G2[1]["R"]; n = 8
    srd(a, 8, P['w2'], SZ['w2'])
    loader_ids(a)
    t_offsets(a, 8, 12, 22, False)
    a("v_lshrrev_b32 v4, 5, v1")
    a("v_lshlrev_b32 v4, 14, v4")
    for i in range(4):
        d = (16*(i & 1) + 4*(i >> 1) - 8*i) * 4096
        a(f"v_add_u32 v{20+i}, v4, v{8+i}")
        if d: a(f"v_add_u32 v{20+i}, {d & 0xffffffff}, v{20+i}")
    a("s_lshl_b32 s32, s29, 12")
    a(f"s_mul_i32 s31, s21, {112*8192}")
    a("s_add_u32 s31, s31, s32")
    a(f"s_add_u32 s31, s31, {WS_U}")
    a("v_lshl_add_u32 v7, v1, 4, s31")
    lds_offs(a)
    a("s_mov_b32 s24, 0                   ; slot")
    a("s_mov_b32 s33, 0")
    a("s_lshl_b32 s34, s21, 13")
    a(f"s_add_u32 s34, s34, {FL_F2}")
    a("v_and_b32 v4, 2, v3")
    a("v_xor_b32 v4, s27, v4")
    a("v_lshl_add_u32 v4, v2, 2, v4")
    a("v_lshlrev_b32 v16, 7, v4")
    a("v_min_u32 v4, 1, v3")
    a("v_lshl_add_u32 v16, v4, 16, v16")
    a("v_add_u32 v16, s34, v16")
    a("s_lshl_b32 s34, s22, 10")
    a(f"s_add_u32 s34, s34, {FL_F1C}")
    a("v_lshl_add_u32 v4, v2, 7, s34")
    a("v_cmp_eq_u32 vcc, 3, v3")
    a("s_mov_b32 s34, 0")
    a("s_mov_b32 s44, 0xffff")
    a("v_cndmask_b32 v16, v16, v4, vcc")
    a("s_mov_b32 s45, 0xff0000")
    a("s_mov_b64 s[40:41], 0")
    a("s_mov_b64 s[52:53], 0")
    a("s_lshl_b32 s35, s28, 2             ; 4*half")
    a("s_and_b32 s36, s22, 12")
    a("s_add_u32 s36, s36, 4")
    a(f"s_sleep {env('L1_SLEEP', 40)}")
    g = Gate(a, "L1")
    nxt = ["s_lshl_b32 s47, s33, 1", "s_add_u32 s47, s47, s28", "s_lshr_b32 s48, s33, 4", "s_add_u32 s48, s48, s35",
           "s_cmp_ge_u32 s33, 16", "s_cselect_b32 s38, 0x10000, 1",
           "s_cmp_ge_u32 s33, 48", "s_cselect_b32 s47, s47, s33", "s_cselect_b32 s48, 3, s48", "s_cselect_b32 s39, 1, 0",
           "s_add_u32 s47, s47, s36", "s_and_b32 s47, s47, 15", "s_lshl_b64 s[38:39], s[38:39], s47",
           "s_mul_i32 s47, s47, 7", "s_add_u32 s48, s48, s47"]
    def post(ph):
        if ph == 0:
            a("s_lshl_b32 s25, s48, 17")
            g.n += 1
            a("s_cmp_eq_u32 s33, 48")
            a(f"s_cbranch_scc1 L1W{g.n}_P")
            a.label(f"L1W{g.n}_D")
            g.tail.append(("sw", f"L1W{g.n}"))
            g.check()
        else:
            a("s_add_u32 m0, s24, s30")
            a("s_lshl_b32 s26, s48, 13")
    def issue(more=True):
        ring_issue(a, 1, (["s_add_u32 s33, s33, 1"] + nxt) if more else [], more, " nt" if env("NT_M2", 0) & 1 else "", 12, [7]*4, SC + (" nt" if env("NT_M2", 0) & 2 else ""), post)
    for x in nxt: a(x)
    a("s_mov_b32 s39, 0xff0000")
    a("s_mov_b32 s50, s31")
    post(0); post(1)
    stamp(a, 8)
    R = env("M2_LA", 3)
    issue(); issue()
    a(f"s_waitcnt vmcnt({n})")
    a("s_barrier")
    for _ in range(R - 2): issue()
    UN = 4
    left = NS - R
    pre = (left - 1) % UN
    if pre == 0: pre = UN
    for _ in range(pre):
        a(f"s_waitcnt vmcnt({(R-2)*n})")
        a("s_barrier")
        issue()
    a("s_mov_b32 s44, -1")
    a("s_mov_b32 s45, 0xffff")
    a(f"s_mov_b32 s23, {(left - 1 - pre) // UN}")
    a(".p2align 6")
    a.label("L1_LOOP")
    for u in range(UN):
        a(f"s_waitcnt vmcnt({(R-2)*n})")
        if u == 0: g.refresh_issue()
        if u == UN - 1: g.refresh_take()
        a("s_barrier")
        issue()
    if PROF["on"]:
        a("s_memtime s[94:95]")
        a("s_memrealtime s[96:97]")
        a("s_lshl_b32 s60, s23, 1")
        a("s_add_u32 s60, s60, 22")
        a("s_add_u32 s61, s60, 1")
        a("s_waitcnt lgkmcnt(0)")
        a("s_mov_b32 s62, m0")
        a("s_mov_b32 m0, s60")
        a("v_writelane_b32 v255, s94, m0")
        a("s_mov_b32 m0, s61")
        a("v_writelane_b32 v255, s96, m0")
        a("s_mov_b32 m0, s62")
    a("s_sub_u32 s23, s23, 1")
    a("s_cmp_lg_u32 s23, 0")
    a("s_cbranch_scc1 L1_LOOP")
    a(f"s_waitcnt vmcnt({(R-2)*n})")
    a("s_barrier")
    issue(more=False)
    for i in range(NS - R, NS - 1):
        a(f"s_waitcnt vmcnt({((NS - 1) - (i + 1))*n})")
        a("s_barrier")
    g.emit()

def g2_compute_setup(a, part):
    c = G2[part]
    a("s_lshr_b32 s27, s20, 1             ; wr")
    a("s_and_b32 s28, s20, 1              ; wc")
    if part == 0:
        a("v_lshrrev_b32 v5, 2, v2            ; r")
        a("v_lshl_add_u32 v6, v3, 3, v5       ; 8g+r")
        a("v_lshlrev_b32 v6, 7, v6")
        a("v_lshrrev_b32 v5, 1, v5")
        a("v_and_b32 v7, 1, v3")
        a("v_lshl_add_u32 v5, v7, 1, v5")
    else:
        a("v_lshrrev_b32 v5, 2, v1            ; 4g + r = l/4")
        a("v_lshlrev_b32 v6, 7, v5")
        a("v_lshrrev_b32 v5, 1, v5")
        a("v_and_b32 v5, 3, v5")
    a("v_lshl_add_u32 v6, v5, 5, v6")
    a("v_and_b32 v7, 3, v1")
    a("v_lshl_add_u32 v6, v7, 3, v6")
    tw, fw = (28, 27) if part == 1 else (27, 28)
    a(f"s_lshl_b32 s60, s{tw}, 13")
    for j in range(4):
        a(f"v_xor_b32 v7, {j*32}, v6")
        a(f"v_add_u32 v{10+j}, s60, v7")
    if part == 0:
        a("v_and_b32 v5, 7, v2")
        a("v_xor_b32 v5, v5, v3")
        a("v_lshlrev_b32 v6, 7, v2")
        a("v_lshl_add_u32 v6, v5, 4, v6")
        a("s_lshl_b32 s60, s28, 13")
        a("s_add_u32 s60, s60, 16384")
        a("v_add_u32 v14, s60, v6")
        a("v_xor_b32 v15, 64, v14")
    else:
        a(f"s_lshl_b32 s60, s{fw}, 12")
        a("s_add_u32 s60, s60, 16384")
        a("v_lshl_add_u32 v14, v1, 4, s60")
    a(f"s_mov_b32 s24, {c['slot0']*M2_SLOT}")
    for i in range(6 if part == 0 else 5): a(f"v_add_u32 v{4+i}, s24, v{10+i}")

def g2_compute(a, part, hooks={}):
    c = G2[part]; pfx = f"C{part}"; NS = c["NS"]
    na = 6 if part == 0 else 5
    def reads(st, t):
        Fb, Tb = c["sets"][st]
        o = []
        for j in range(4):
            if part == 0: o.append(f"ds_read_b128 {vr(Fb+4*j,4)}, v{8+t} offset:{j*2048}")
            else: o.append(f"ds_read_b128 {vr(Fb+4*j,4)}, v8 offset:{t*8192 + j*1024}")
            o.append(f"ds_read_b64_tr_b16 {vr(Tb+4*j,2)}, v{4+j} offset:{t*4096}")
            o.append(f"ds_read_b64_tr_b16 {vr(Tb+4*j+2,2)}, v{4+j} offset:{t*4096+(512 if part == 0 else 2048)}")
        return o
    def mfmas(st, first=False):
        Fb, Tb = c["sets"][st]
        A, B = (Fb, Tb) if part == 1 else (Tb, Fb)
        return [f"{M16} {vr(g2acc(part,i,j),4)}, {vr(A+4*i,4)}, {vr(B+4*j,4)}, {'0' if first else vr(g2acc(part,i,j),4)}"
                for i in range(4) for j in range(4)]
    upd = slot_advance(24, M2_SLOT, c["R"]) + [f"v_add_u32 v{4+i}, s24, v{10+i}" for i in range(na)]
    def stage(last=False, first=False):
        seq = interleave(mfmas(0, first), reads(1, 1), 0, 10)
        if not last:
            out = []; k = 0; cnt = 0
            for x in seq:
                out.append(x)
                if x.startswith("v_mfma"):
                    cnt += 1
                    if cnt > 10:
                        for _ in range(2):
                            if k < len(upd): out.append(upd[k]); k += 1
            assert k == len(upd)
            seq = out
        for x in seq: a(x)
        a("s_waitcnt lgkmcnt(0)")
        if not last:
            a("s_barrier")
            seq = interleave(mfmas(1), reads(0, 0), 0, 10)
        else:
            seq = mfmas(1)
        for x in seq: a(x)
        if not last: a("s_waitcnt lgkmcnt(0)")
    for x in reads(0, 0): a(x)
    a("s_waitcnt lgkmcnt(0)")
    stage(first=True)
    if 0 in hooks: hooks[0]()
    k = 1; nl = 0
    stops = sorted([h for h in hooks if h > 0] + [NS - 2])
    for h in stops:
        cnt = h - k + 1
        if cnt >= 4:
            if cnt % 2: stage(); cnt -= 1
            nl += 1
            a(f"s_mov_b32 s23, {cnt // 2}")
            a(".p2align 6")
            a.label(f"{pfx}_LOOP{nl}")
            stage(); stage()
            a("s_sub_u32 s23, s23, 1")
            a("s_cmp_lg_u32 s23, 0")
            a(f"s_cbranch_scc1 {pfx}_LOOP{nl}")
        else:
            for _ in range(cnt): stage()
        if cnt > 0 and h in hooks: hooks[h]()
        k = max(k, h + 1)
    stage(last=True)

def y_addr(a):
    a("s_lshl_b32 s37, s22, 3")
    a("s_add_u32 s37, s37, s21")
    a("s_lshl_b32 s37, s37, 2")
    a("s_add_u32 s37, s37, s20")
    a("s_lshl_b32 s38, s37, 7")
    a(f"s_add_u32 s38, s38, {FL_F4}")
    a("s_lshl_b32 s37, s37, 13")
    a(f"s_add_u32 s37, s37, {WS_Y}")

def g_role(a):
    a(f"s_and_b32 s21, s{XCD}, 1")
    a("s_lshl_b32 s21, s21, 2")
    a(f"s_and_b32 s29, s{IDX}, 3")
    a("s_add_u32 s21, s21, s29")
    a(f"s_lshr_b32 s22, s{XCD}, 1")
    a("s_lshl_b32 s22, s22, 2")
    a(f"s_lshr_b32 s29, s{IDX}, 2")
    a("s_add_u32 s22, s22, s29")
    g_prep(a)
    a("s_cmp_ge_u32 s20, 4")
    a("s_cbranch_scc1 G_LOADER")
    mlp1_compute(a)
    stamp(a, 6)
    mlp1_epilogue(a)
    stamp(a, 7)
    g2_compute_setup(a, 1)
    stamp(a, 8)
    a("s_barrier")
    stamp(a, 9)
    def lvl1():
        a("s_waitcnt vmcnt(0)")
        flag_store(a, 9, 15, "s36", "1")
        srd(a, 16, P['b2'], SZ['b2'])
        a("s_lshl_b32 s29, s22, 7")
        a("s_lshl_b32 s30, s28, 6")
        a("s_add_u32 s29, s29, s30")
        a("v_add_u32 v92, s29, v2")
        a("v_lshlrev_b32 v93, 1, v92")
        a("v_lshlrev_b32 v92, 2, v92")
        a(f"s_mov_b32 s30, {WS_G}")
        for j in range(4):
            a(f"buffer_load_ushort v{84+j}, v93, s[16:19], 0 offen offset:{j*32}")
            a(f"buffer_load_dword v{88+j}, v92, s[12:15], s30 offen offset:{j*64}{SC}")
    g2_compute(a, 1, {env("L1_DELAY", 2): lvl1})
    stamp(a, 10)
    y_addr(a)
    a("s_waitcnt vmcnt(0)")
    for j in range(4):
        a(f"v_sub_f32 v{88+j}, 1.0, v{88+j}")
        a(f"v_lshlrev_b32 v{84+j}, 16, v{84+j}")
    for j in range(4): a(f"v_mul_f32 v{84+j}, v{84+j}, v{88+j}")
    a("v_lshlrev_b32 v8, 4, v1")
    a("s_add_u32 s39, s37, 4096")
    for i in range(4):
        for j in range(4):
            x = g2acc(1, i, j)
            for r in range(4): a(f"v_fma_f32 v{x+r}, v{x+r}, v{88+j}, v{84+j}")
            a(f"v_cvt_pk_bf16_f32 v{16+i*8+2*j}, v{x}, v{x+1}")
            a(f"v_cvt_pk_bf16_f32 v{17+i*8+2*j}, v{x+2}, v{x+3}")
        for h in range(2):
            q = i * 2 + h
            a(f"buffer_store_dwordx4 {vr(16+q*4,4)}, v8, s[12:15], s{37 if q < 4 else 39} offen offset:{(q%4)*1024}{SC}")
    a("v_mov_b32 v9, 0")
    a("s_waitcnt vmcnt(0)")
    flag_store(a, 9, 10, "s38", "1")
    stamp(a, 11)
    stamp_flush(a, 0, 12, 20)
    a("s_endpgm")
    a.label("G_LOADER")
    mlp1_loader(a)
    stamp(a, 6)
    mlp2_loader(a)
    stamp(a, 10)
    stamp_flush(a, 1, 12, 20)
    a("s_endpgm")

QA, QB, KF, VF, PA, PB, ONES, LA, LB = 16, 24, 32, 40, 48, 56, 64, 68, 72
SA, SB, OA, OB, NMA, NMB = 80, 96, 112, 128, 144, 160
VG, VL16 = 76, 77
T1, T2, TO, TU, WOT = 240, 241, 242, 243, 244
BOUND_T = 40.0
QL = 65536
KML = 98304 - 0

def a_role(a):
    pfx = "AT"
    a(f"s_and_b32 s21, s{IDX}, 7")
    a(f"s_lshl_b32 s22, s{XCD}, 1")
    a(f"s_lshr_b32 s29, s{IDX}, 3")
    a("s_add_u32 s22, s22, s29")
    a("s_and_b32 s56, s20, 3                ; st")
    a("s_lshr_b32 s57, s20, 2               ; hp")
    srd(a, 8, P['wq'], SZ['wq']); srd(a, 16, P['x'], SZ['x'])
    if env("PF_Q", 1):
        a("s_sub_u32 s34, s2, 128")
        a("s_lshl_b32 s34, s34, 3")
        a("s_add_u32 s34, s34, s20")
        a("s_lshl_b32 s34, s34, 7")
        a("v_lshlrev_b32 v14, 17, v2")
        a("s_mov_b64 exec, 0xffff")
        a("buffer_load_dword v254, v14, s[8:11], s34 offen")
        a("s_mov_b64 exec, -1")
    a(f"v_lshlrev_b32 v{VL16}, 4, v1        ; lane*16")
    for r in range(32): a(f"v_mov_b32 v{OA+r}, 0")
    for r in range(4):
        a(f"v_mov_b32 v{LA+r}, 0"); a(f"v_mov_b32 v{LB+r}, 0"); a(f"v_mov_b32 v{PB+4+r}, 0"); a(f"v_mov_b32 v{VF+4+r}, 0")
    a("v_lshrrev_b32 v7, 2, v2")
    a("v_xor_b32 v7, v7, v3")
    a("v_and_b32 v7, 1, v7")
    a("v_and_b32 v12, 3, v2")
    a("v_or_b32 v7, v7, v12")
    a("v_cmp_eq_u32 vcc, 0, v7")
    a("v_mov_b32 v12, 0x3f803f80")
    a("s_nop 0")
    a(f"v_cndmask_b32 v{ONES}, 0, v12, vcc")
    for r in range(1, 4): a(f"v_mov_b32 v{ONES+r}, v{ONES}")
    a(f"s_lshl_b32 s34, s{IDX}, 3")
    a("s_add_u32 s34, s34, s20")
    a("s_lshl_b32 s35, s34, 2               ; w1: row = gl>>4")
    a("v_add_u32 v6, s35, v3")
    a("s_movk_i32 s35, 7168")
    a("v_mul_lo_u32 v6, v6, s35")
    a("v_min_u32 v7, 13, v2")
    a("v_lshl_add_u32 v6, v7, 7, v6")
    a(f"s_lshr_b32 s35, s{XCD}, 1")
    a("s_mul_i32 s37, s35, 1792")
    a(f"v_add_u32 v{T1}, s37, v6")
    a(f"s_mul_i32 s37, s{IDX}, 7            ; w2: row = (7*idx + 4*hp)*32 + 8*st + lane/8")
    a("s_lshl_b32 s38, s57, 2")
    a("s_add_u32 s37, s37, s38")
    a("s_lshl_b32 s37, s37, 2")
    a("s_add_u32 s37, s37, s56")
    a("s_lshl_b32 s37, s37, 3")
    a("v_lshrrev_b32 v6, 3, v1")
    a("v_add_u32 v6, s37, v6")
    a("v_lshlrev_b32 v6, 12, v6")
    a("v_and_b32 v7, 7, v1")
    a("v_lshl_add_u32 v6, v7, 7, v6")
    a("s_lshl_b32 s35, s35, 10")
    a(f"v_add_u32 v{T2}, s35, v6")
    a("s_lshl_b32 s34, s34, 13")
    a(f"v_lshl_add_u32 v{TO}, v1, 7, s34")
    a(f"s_and_b32 s34, s{XCD}, 1")
    a("s_lshl_b32 s34, s34, 2")
    a("s_add_u32 s34, s34, s56")
    a("s_mul_i32 s34, s34, 112")
    a(f"s_mul_i32 s35, s{IDX}, 7")
    a("s_add_u32 s34, s34, s35")
    a("s_lshl_b32 s35, s57, 2")
    a("s_add_u32 s34, s34, s35")
    a("s_lshl_b32 s34, s34, 13")
    a(f"s_add_u32 s34, s34, {WS_U}")
    a(f"v_lshl_add_u32 v{TU}, v1, 7, s34")
    loader_ids(a)
    t_offsets(a, WOT, 11, 21, False)
    a(f"s_lshl_b32 s34, s{IDX}, 2")
    a("s_add_u32 s34, s34, s56              ; omega")
    a("s_lshr_b32 s58, s34, 3               ; sigma")
    a("s_and_b32 s34, s34, 7                ; sub")
    a(f"s_lshr_b32 s35, s{XCD}, 1")
    a("s_lshl_b32 s59, s35, 2")
    a("s_add_u32 s59, s59, 4")
    a("s_lshl_b32 s35, s35, 10")
    a("s_lshl_b32 s37, s34, 14")
    a("s_add_u32 s35, s35, s37")
    a("v_lshrrev_b32 v6, 3, v1")
    a("v_lshlrev_b32 v6, 12, v6")
    a("v_and_b32 v7, 7, v1")
    a("v_lshl_add_u32 v6, v7, 7, v6")
    a("v_add_u32 v6, s35, v6                ; w2 offset")
    a(f"s_and_b32 s35, s{XCD}, 1")
    a("s_lshl_b32 s35, s35, 2")
    a("s_lshr_b32 s37, s34, 1")
    a("s_add_u32 s35, s35, s37")
    a(f"s_mul_i32 s35, s35, {112*8192}")
    a("s_and_b32 s37, s34, 1")
    a("s_lshl_b32 s37, s37, 12")
    a("s_add_u32 s35, s35, s37")
    a(f"s_add_u32 s35, s35, {WS_U - 4096}")
    a("v_lshl_add_u32 v7, v1, 7, s35")
    a("v_cmp_gt_u32 vcc, 32, v1")
    a(f"v_mov_b32 v12, s{P['ws']}")
    a(f"v_mov_b32 v13, s{P['ws']+1}")
    a(f"v_mov_b32 v14, s{P['w2']}")
    a(f"v_mov_b32 v15, s{P['w2']+1}")
    a("v_cndmask_b32 v6, v7, v6, vcc")
    a("v_cndmask_b32 v12, v12, v14, vcc")
    a("v_cndmask_b32 v13, v13, v15, vcc")
    a("v_mov_b32 v14, 8192")
    a("v_mov_b32 v15, 0x20000")
    a("v_cndmask_b32 v249, v14, v15, vcc")
    a("v_add_co_u32 v250, vcc, v12, v6")
    a("s_nop 1")
    a("v_addc_co_u32 v251, vcc, 0, v13, vcc")
    a(f"s_lshl_b32 s34, s{IDX}, 2")
    a("s_add_u32 s34, s34, s56")
    a("s_mul_i32 s34, s34, 6")
    a("v_add_u32 v248, s34, v1")
    a("v_lshlrev_b32 v248, 7, v248")
    a("v_min_u32 v248, MK_END-MK_PC, v248")
    def touch(kind, k):
        if kind in ("m2", "m2w", "m2u"):
            if k < 12:
                a(f"s_add_u32 s34, s59, {4*(k & 3)}")
                a("s_and_b32 s34, s34, 15")
                a("s_lshr_b32 s35, s58, 1")
                a("s_add_u32 s34, s34, s35")
                a("s_mul_i32 s34, s34, 7")
                a("s_and_b32 s35, s58, 1")
                a("s_lshl_b32 s35, s35, 2")
                a("s_add_u32 s34, s34, s35")
                a(f"s_add_u32 s34, s34, {k >> 2}")
            else:
                a("s_add_u32 s34, s59, s58")
                a(f"s_add_u32 s34, s34, {8*(k - 12)}")
                a("s_and_b32 s34, s34, 15")
                a("s_mul_i32 s34, s34, 7")
                a("s_add_u32 s34, s34, 3")
            a("v_mad_u64_u32 v[14:15], s[36:37], s34, v249, v[250:251]")
            if kind == "m2w": a("s_mov_b32 exec_hi, 0")
            if kind == "m2u": a("s_mov_b32 exec_lo, 0")
            a("global_load_dword v254, v[14:15], off")
            if kind != "m2": a("s_mov_b64 exec, -1")
        elif kind == "wom":
            srd(a, 44, P['wo'], SZ['wo'])
            a("s_sub_u32 s34, s2, 128")
            a("s_lshl_b32 s34, s34, 2")
            a("s_add_u32 s34, s34, s56")
            a("s_lshl_b32 s34, s34, 12")
            a("v_lshlrev_b32 v14, 7, v1")
            a("s_mov_b32 exec_hi, 0")
            a("buffer_load_dword v254, v14, s[44:47], s34 offen")
            a("s_mov_b32 exec_hi, -1")
        elif kind == "code":
            a("s_mov_b64 exec, 63")
            a("global_load_dword v254, v248, s[4:5]")
            a("s_mov_b64 exec, -1")
        elif kind == "u":
            a(f"s_mov_b32 s34, {k*8192}")
            a(f"buffer_load_dword v254, v{TU}, s[12:15], s34 offen sc1")
        elif kind == "w1":
            srd(a, 44, P['w1'], SZ['w1'])
            a(f"s_mov_b32 s34, {k*512*7168}")
            a(f"buffer_load_dword v254, v{T1}, s[44:47], s34 offen")
        elif kind == "w2":
            srd(a, 44, P['w2'], SZ['w2'])
            a(f"s_mov_b32 s34, {k*32*4096}")
            a(f"buffer_load_dword v254, v{T2}, s[44:47], s34 offen")
        else:
            srd(a, 44, P['wo'], SZ['wo'])
            a(f"s_mov_b32 s34, {k << 20}")
            a(f"buffer_load_dword v254, v{TO}, s[44:47], s34 offen")
    a("s_cmp_ge_u32 s20, 4")
    a("s_cbranch_scc1 AQ_LOADER")
    g2_compute_setup(a, 0)
    a("s_waitcnt lgkmcnt(0)")
    tag_finish(a)
    stamp(a, 1)
    a("s_barrier")
    stamp(a, 2)
    g2_compute(a, 0)
    stamp(a, 3)
    cq = LOG2E / (DH ** 0.5)
    a(f"v_mov_b32 v14, {fhex(cq)}")
    a(f"v_mov_b32 v15, {fhex(cq)}")
    a("v_and_b32 v4, 1, v3")
    a("v_lshlrev_b32 v4, 9, v4")
    a("v_lshl_add_u32 v4, v2, 4, v4")
    a("v_lshrrev_b32 v5, 1, v3")
    a("v_lshl_add_u32 v4, v5, 3, v4")
    a("s_lshl_b32 s34, s27, 14")
    a("s_lshl_b32 s35, s28, 12")
    a("s_add_u32 s34, s34, s35")
    a(f"s_add_u32 s34, s34, {QL}")
    a("v_add_u32 v4, s34, v4")
    for i in range(4):
        for j in range(4):
            x = g2acc(0, i, j); o = 176 + (i*4+j)*2
            a(f"v_pk_mul_f32 {vr(x,2)}, {vr(x,2)}, v[14:15]")
            a(f"v_pk_mul_f32 {vr(x+2,2)}, {vr(x+2,2)}, v[14:15]")
            a(f"v_cvt_pk_bf16_f32 v{o}, v{x}, v{x+1}")
            a(f"v_cvt_pk_bf16_f32 v{o+1}, v{x+2}, v{x+3}")
            a(f"ds_write_b64 v4, {vr(o,2)} offset:{(i>>1)*8192 + (j>>1)*2048 + (i&1)*1024 + (j&1)*256}")
    a("s_waitcnt lgkmcnt(0)")
    a("s_branch AQ_JOIN")
    a.label("AQ_LOADER")
    NS = 16; R = 4; n = 8
    t_offsets(a, 8, 11, 21, True)
    a("v_lshrrev_b32 v4, 3, v1")
    a("v_and_b32 v5, 7, v1")
    a("v_xor_b32 v5, v5, v4")
    a("s_lshl_b32 s34, s22, 7")
    a("s_lshl_b32 s35, s27, 5")
    a("s_add_u32 s34, s34, s35")
    a("v_add_u32 v4, s34, v4")
    a("v_lshlrev_b32 v4, 11, v4")
    a("v_lshl_add_u32 v4, v5, 4, v4")
    for i in range(4): a(f"v_add_u32 v{12+i}, {i*(8*2048-1024)}, v4")
    lds_offs(a)
    a("s_mov_b32 s24, 0")
    a("s_and_b32 s26, s22, 1")
    a(f"s_lshl_b32 s26, s26, {10 if env('Q_ROT', 1) else 31}")
    a("s_and_b32 s26, s26, 2047")
    a("s_lshl_b32 s25, s26, 10")
    a("s_lshl_b32 s34, s28, 16")
    a("s_add_u32 s25, s25, s34")
    a("s_mov_b32 s50, s31")
    a("s_mov_b32 m0, s30")
    def qpost(ph):
        if ph == 0:
            a(f"s_add_u32 s25, s25, {64*2048}")
            a("s_and_b32 s25, s25, 0x1fffff")
            a("s_add_u32 s48, s26, 128")
        else:
            a("s_add_u32 m0, s24, s30")
            a("s_and_b32 s26, s48, 2047")
    def qissue(more=True): ring_issue(a, 0, [], more, NTQ, 16, [12, 13, 14, 15], NTQ, qpost)
    a(f"s_waitcnt vmcnt({0 if env('A_DELAY', 1) else 63}) lgkmcnt(0)")
    tag_finish(a)
    qissue(); qissue()
    stamp(a, 1)
    a(f"s_waitcnt vmcnt({n})")
    a("s_barrier")
    stamp(a, 2)
    qissue()
    a("s_mov_b32 s23, 6")
    a(".p2align 6")
    a.label("AQ_LOOP")
    for u in range(2):
        a(f"s_waitcnt vmcnt({n})")
        a("s_barrier")
        qissue()
    a("s_sub_u32 s23, s23, 1")
    a("s_cmp_lg_u32 s23, 0")
    a("s_cbranch_scc1 AQ_LOOP")
    a(f"s_waitcnt vmcnt({n})")
    a("s_barrier")
    qissue(more=False)
    a(f"s_waitcnt vmcnt({n})")
    a("s_barrier")
    a("s_cmp_eq_u32 s20, 4")
    a("s_cbranch_scc0 AQ_NP")
    a(f"s_mov_b32 s34, {FL_F1B}")
    a(f"s_mov_b32 s35, {FL_F1B + 8192}")
    a("v_lshlrev_b32 v4, 7, v1")
    poll(a, [(4, "s34", 0), (4, "s35", 0)], 12, "ATP", sleep=env("KV_SLEEP", 8))
    a.label("AQ_NP")
    a("s_waitcnt vmcnt(0)")
    a("s_barrier")
    stamp(a, 3)
    a(f"s_mov_b32 s34, {WS_KN}")
    a("v_lshlrev_b32 v12, 7, v1")
    a(f"buffer_load_dword v13, v12, s[12:15], s34 offen{SC}")
    a("s_lshl_b32 s35, s27, 13")
    a(f"s_add_u32 s34, s35, {WS_KV}")
    for h in range(2):
        a(f"s_add_u32 m0, s35, {131072 + h*4096}")
        a("s_nop 0")
        for i in range(4): a(f"buffer_load_dwordx4 v{VL16}, s[12:15], s34 offen offset:{i*1024}{SC} lds")
        a("s_add_u32 s34, s34, 4096")
    a("s_waitcnt vmcnt(8)")
    wave_reduce(a, [13], op="v_max_f32")
    a("v_mov_b32 v12, 0")
    a("s_mov_b32 exec_lo, 0")
    a("s_mov_b32 exec_hi, 0x80000000")
    a("ds_write_b32 v12, v13")
    a("s_mov_b64 exec, -1")
    a("s_waitcnt vmcnt(0) lgkmcnt(0)")
    a.label("AQ_JOIN")
    stamp(a, 4)
    a("s_barrier")
    stamp(a, 14)
    a(f"v_mov_b32 v4, v{VL16}")
    a("s_lshl_b32 s34, s57, 14")
    a("s_lshl_b32 s35, s56, 11")
    a("s_add_u32 s34, s34, s35")
    a(f"s_add_u32 s34, s34, {QL}")
    a("v_add_u32 v12, s34, v4")
    a("v_mov_b32 v13, 0")
    a(f"ds_read_b128 {vr(QA,4)}, v12")
    a(f"ds_read_b128 {vr(QA+4,4)}, v12 offset:1024")
    a(f"ds_read_b128 {vr(QB,4)}, v12 offset:8192")
    a(f"ds_read_b128 {vr(QB+4,4)}, v12 offset:9216")
    a("ds_read_b32 v78, v13")
    a("v_add_u32 v5, 131072, v4")
    a("v_add_u32 v6, 147456, v4")
    a(f"ds_read_b128 {vr(KF,4)}, v5")
    a(f"ds_read_b128 {vr(KF+4,4)}, v5 offset:1024")
    a(f"ds_read_b128 {vr(VF,4)}, v5 offset:2048")
    a("s_lshl_b32 s27, s20, 11              ; w*2048")
    a(f"s_add_u32 s28, s27, {WS_KV + 2*16384}")
    a("s_mov_b32 s24, s27")
    a("s_waitcnt lgkmcnt(3)")
    a("s_barrier")
    b = Asm()
    b("v_mov_b32 v12, 0")
    for i in range(8):
        b(f"v_dot2_f32_bf16 v12, v{QA+i}, v{QA+i}, v12")
        b(f"v_dot2_f32_bf16 v13, v{QB+i}, v{QB+i}, v13")
    b("s_nop 2")
    b("v_mov_b32 v14, v12")
    b("v_mov_b32 v15, v13")
    b("s_nop 1")
    b("v_permlane32_swap_b32 v12, v14")
    b("v_permlane32_swap_b32 v13, v15")
    b(f"v_mul_f32 v78, {fhex(1.03)}, v78")
    b("v_add_f32 v12, v12, v14")
    b("v_add_f32 v13, v13, v15")
    b("v_mul_f32 v12, v12, v78")
    b("v_mul_f32 v13, v13, v78")
    b("v_sqrt_f32 v12, v12")
    b("v_sqrt_f32 v13, v13")
    b(f"v_mov_b32 v14, {fhex(BOUND_T)}")
    b("v_max_f32 v15, v12, v13")
    kvc = ["s_mov_b32 m0, s24", "s_add_u32 s24, s24, 16384",
           f"buffer_load_dwordx4 v4, s[12:15], s28 offen{SC} lds",
           f"buffer_load_dwordx4 v4, s[12:15], s28 offen offset:1024{SC} lds", "s_add_u32 s28, s28, 16384"]
    for x in interleave([l.strip() for l in b.lines], kvc * 3, 0, len(b.lines)): a(x)
    a("v_cmp_nle_f32 vcc, v15, v14")
    a("s_nop 1")
    a(f"s_cbranch_vccnz {pfx}_EXACT")
    a.label(f"{pfx}_FAST")
    for r in range(16):
        a(f"v_sub_f32 v{NMA+r}, 0, v12"); a(f"v_sub_f32 v{NMB+r}, 0, v13")
    TT = [0, 3]
    plan = eval(os.environ.get("PF_PLAN", "[{0:('w1',1), 2:('w1',2), 4:('w1',3), 7:('m2w',1), 10:('m2',3), 11:('m2',5), 12:('m2',7), 13:('m2',9), 14:('m2',11), 15:('m2',13)}, {0:('w1',1), 1:('w1',2), 3:('w1',3), 4:('wom',0), 6:('m2w',0), 7:('m2w',2), 9:('m2u',2), 10:('m2',4), 11:('m2',6), 12:('m2',8), 13:('m2',10), 14:('m2',12)}]"))
    ev = [sum(1 << c for c in plan[hp]) for hp in range(2)]
    a("s_cmp_eq_u32 s57, 0")
    a(f"s_mov_b32 s40, 0x{ev[0]:x}")
    a(f"s_cselect_b32 s40, s40, 0x{ev[1]:x}")
    a("s_movk_i32 s41, 0x2222")
    a("s_mov_b32 s23, 0                     ; chunk c")
    a("s_mov_b32 s26, 147456")
    a("s_waitcnt lgkmcnt(0)")
    a(f"{M32} {vr(SA,16)}, {vr(KF,4)}, {vr(QA,4)}, {vr(NMA,16)}")
    a(f"{M32} {vr(SA,16)}, {vr(KF+4,4)}, {vr(QA+4,4)}, {vr(SA,16)}")
    a("s_nop 8")
    tab = eval(os.environ.get('AT_TAB', '[[2, 2, 2, 0, 2, 2, 2, 0], [1] * 8]'))
    def step(a, cur, tile, hp):
        if cur == 'A':
            S_, P_, O_, L_ = SA, PA, OA, LA
            Sn, Qn, NMn, Po, Oo, Lo = SB, QB, NMB, PB, OB, LB
        else:
            S_, P_, O_, L_ = SB, PB, OB, LB
            Sn, Qn, NMn, Po, Oo, Lo = SA, QA, NMA, PA, OA, LA
        e = lambda r: a(f"v_exp_f32 v{S_+r}, v{S_+r}")
        c = lambda i: a(f"v_cvt_pk_bf16_f32 v{P_+i}, v{S_+2*i}, v{S_+2*i+1}")
        nreg, noff = ("v5", (tile + 1) * 4096) if tile < 3 else ("v6", 0)
        if cur == 'A':
            if tile == 3:
                a("s_bitcmp1_b32 s41, s23")
                a(f"s_cbranch_scc1 {pfx}_EVB_{hp}")
                a.label(f"{pfx}_EBB_{hp}")
                a("s_cmp_gt_u32 s23, 10")
                a(f"s_cbranch_scc1 {pfx}_NK_{hp}")
                for x in kvc: a(x)
                a("s_cmp_ge_u32 s24, 163840")
                a("s_cselect_b32 s24, s27, s24")
                a.label(f"{pfx}_NK_{hp}")
            if tile == TT[hp]:
                a("s_bitcmp1_b32 s40, s23")
                a(f"s_cbranch_scc1 {pfx}_EVT_{hp}")
                a.label(f"{pfx}_EBT_{hp}")
        k_ = 2 * tile + (cur == 'B')
        if tab[hp][k_] != tab[hp][k_ - 1] and not (tab[hp][k_] == 2 and env("AT_LOWEND", 1)): a(f"s_setprio {tab[hp][k_]}")
        if cur == 'B': a("s_waitcnt lgkmcnt(1)")
        a(f"{M32} {vr(Sn,16)}, {vr(KF,4)}, {vr(Qn,4)}, {vr(NMn,16)}")
        e(0); e(1); e(2); e(3)
        a(f"{M32} {vr(Sn,16)}, {vr(KF+4,4)}, {vr(Qn+4,4)}, {vr(Sn,16)}")
        if cur == 'A':
            a(f"ds_read_b128 {vr(KF,4)}, {nreg} offset:{noff}")
            a(f"ds_read_b128 {vr(KF+4,4)}, {nreg} offset:{noff+1024}")
        c(0); c(1); e(4); e(5); e(6)
        if cur == 'B': a("s_waitcnt lgkmcnt(0)")
        a(f"{M32} {vr(Oo,16)}, {vr(VF+4,4)}, {vr(Po+4,4)}, {vr(Oo,16)}")
        if cur == 'A':
            a(f"ds_read_b128 {vr(VF+4,4)}, v5 offset:{tile*4096+3072}")
        e(7); c(2); c(3); e(8); e(9)
        a(f"{M16} {vr(Lo,4)}, {vr(ONES,4)}, {vr(Po+4,4)}, {vr(Lo,4)}")
        e(10); e(11)
        if cur == 'A': a("s_waitcnt lgkmcnt(3)")
        a(f"{M32} {vr(O_,16)}, {vr(VF,4)}, {vr(P_,4)}, {vr(O_,16)}")
        if cur == 'B':
            a(f"ds_read_b128 {vr(VF,4)}, {nreg} offset:{noff+2048}")
        if cur == 'B' and tile == 3:
            a("s_add_u32 s26, s26, 16384")
            a("s_cmp_ge_u32 s26, 163840")
            a("s_cselect_b32 s26, 0, s26")
            a("s_add_u32 s23, s23, 1")
        c(4); c(5); e(12); e(13); e(14)
        a(f"{M16} {vr(L_,4)}, {vr(ONES,4)}, {vr(P_,4)}, {vr(L_,4)}")
        e(15)
        if hp == 0 and tab[0][k_] == 0 and env("AT_LOWEND", 1): a("s_setprio 2")
        c(6); c(7)
    stamp(a, 5)
    if env("DIAG", 0) == 2:
        a("s_memrealtime s[6:7]")
        a("s_waitcnt lgkmcnt(0)")
    a("s_cmp_eq_u32 s57, 1")
    a(f"s_cbranch_scc1 {pfx}_MP1")
    for hp in range(2):
        a.label(f"{pfx}_MP{hp}")
        a(f"s_setprio {tab[hp][0]}")
        b = Asm()
        for tile in range(4):
            step(b, 'A', tile, hp); step(b, 'B', tile, hp)
        if PROF["on"] and env("PROF_AT", 0):
            b("s_memtime s[94:95]")
            b("s_memrealtime s[96:97]")
            b("s_lshl_b32 s60, s23, 1")
            b("s_add_u32 s60, s60, 30")
            b("s_add_u32 s61, s60, 1")
            b("s_waitcnt lgkmcnt(0)")
            b("s_mov_b32 m0, s60")
            b("v_writelane_b32 v255, s94, m0")
            b("s_mov_b32 m0, s61")
            b("v_writelane_b32 v255, s96, m0")
        b("v_mov_b32 v5, v6")
        b("v_add_u32 v6, s26, v4")
        b("s_cmp_lt_u32 s23, 16")
        b(f"s_cbranch_scc1 {pfx}_ML{hp}")
        a(".p2align 6")
        a.label(f"{pfx}_ML{hp}")
        for l in align8(b.lines): a(l)
        if hp == 0: a(f"s_branch {pfx}_MEND")
    a.label(f"{pfx}_MEND")
    stamp(a, 6)
    if env("DIAG", 0) == 3:
        a("s_memrealtime s[6:7]")
        a("s_waitcnt lgkmcnt(0)")
    a(f"{M32} {vr(OB,16)}, {vr(VF+4,4)}, {vr(PB+4,4)}, {vr(OB,16)}")
    a(f"{M16} {vr(LB,4)}, {vr(ONES,4)}, {vr(PB+4,4)}, {vr(LB,4)}")
    a("s_setprio 3")
    a("s_lshl_b32 s34, s22, 18")
    a("s_lshl_b32 s35, s21, 2")
    a("s_lshl_b32 s33, s57, 1")
    a("s_add_u32 s35, s35, s33")
    a("s_lshl_b32 s35, s35, 13")
    a("s_add_u32 s34, s34, s35")
    a("s_lshl_b32 s36, s56, 11              ; 2st*1024")
    a("s_add_u32 s34, s34, s36")
    a(f"s_add_u32 s34, s34, {WS_O}")
    a("s_add_u32 s35, s34, 8192")
    a("v_and_b32 v7, 1, v3")
    a("v_lshlrev_b32 v7, 10, v7")
    a("v_lshrrev_b32 v12, 1, v3")
    a("v_lshl_add_u32 v7, v12, 8, v7")
    a("v_lshl_add_u32 v7, v2, 4, v7")
    a("s_lshl_b32 s33, s57, 15")
    a("s_add_u32 s33, s33, s36")
    a(f"s_add_u32 s33, s33, {2*M2_SLOT + 16384}")
    a("v_add_u32 v8, s33, v7")
    a("s_lshl_b32 s36, s22, 3")
    a("s_add_u32 s36, s36, s21")
    a("s_lshl_b32 s36, s36, 3")
    a("s_add_u32 s36, s36, s20")
    a("s_lshl_b32 s36, s36, 7")
    a(f"s_add_u32 s36, s36, {FL_F3}")
    a("s_waitcnt vmcnt(0) lgkmcnt(0)")
    for hd, (O_, L_, P_, so) in enumerate(((OA, LA, PA, 34), (OB, LB, PB, 35))):
        a(f"v_rcp_f32 v12, v{L_}")
        a("s_nop 0")
        a(f"v_mul_f32 v12, v12, v{VG}")
        for r in range(16): a(f"v_mul_f32 v{O_+r}, v{O_+r}, v12")
        for p in range(2):
            a(f"v_cvt_pk_bf16_f32 v{P_+4*p}, v{O_+4*p}, v{O_+4*p+1}")
            a(f"v_cvt_pk_bf16_f32 v{P_+4*p+1}, v{O_+4*p+2}, v{O_+4*p+3}")
            a(f"v_cvt_pk_bf16_f32 v{P_+4*p+2}, v{O_+8+4*p}, v{O_+8+4*p+1}")
            a(f"v_cvt_pk_bf16_f32 v{P_+4*p+3}, v{O_+8+4*p+2}, v{O_+8+4*p+3}")
            a(f"buffer_store_dwordx4 {vr(P_+4*p,4)}, v7, s[12:15], s{so} offen offset:{p*512}{SC}")
            a(f"ds_write_b128 v8, {vr(P_+4*p,4)} offset:{hd*8192 + p*512}")
    a("s_setprio 0")
    a("s_cmp_ge_u32 s20, 4")
    a("s_cbranch_scc1 AO_LOADER")
    g2_compute_setup(a, 2)
    srd(a, 48, P['out'], SZ['out'])
    y_addr(a)
    a("s_add_u32 s39, s37, 4096")
    a("s_mov_b32 s33, 0")
    a("v_lshlrev_b32 v80, 4, v1")
    a("v_mov_b32 v82, 0")
    a("s_waitcnt lgkmcnt(0)")
    stamp(a, 7)
    a("s_barrier")
    stamp(a, 9)
    YB = 84
    def oflag():
        a("s_waitcnt vmcnt(0)")
        flag_store(a, 9, 15, "s36", "1")
    def ypoll():
        a("buffer_load_dword v81, v82, s[12:15], s38 offen sc1")
    def yloads():
        for q in range(8):
            a(f"buffer_load_dwordx4 {vr(YB+4*q,4)}, v80, s[12:15], s{37 if q < 4 else 39} offen offset:{(q%4)*1024}{SC}")
    def ytry():
        a("s_waitcnt vmcnt(0)")
        a(f"v_cmp_ne_u32 vcc, s{TAG}, v81")
        a("s_nop 1")
        a("s_cbranch_vccnz AO_NY")
        yloads()
        a("s_mov_b32 s33, 1")
        a.label("AO_NY")
    g2_compute(a, 2, {0: oflag, 11: ypoll, 13: ytry})
    stamp(a, 10)
    a("s_cmp_eq_u32 s33, 1")
    a("s_cbranch_scc1 AO_HY")
    poll(a, [(82, "s38", 0)], 81, "YP", sleep=4)
    yloads()
    a.label("AO_HY")
    stamp(a, 11)
    a("s_lshl_b32 s29, s22, 7")
    a("s_lshl_b32 s30, s28, 6")
    a("s_add_u32 s29, s29, s30")
    a("v_add_u32 v4, s29, v2")
    a("v_lshlrev_b32 v10, 11, v4")
    a("s_lshl_b32 s30, s21, 8")
    a("s_lshl_b32 s31, s27, 7")
    a("s_add_u32 s30, s30, s31")
    a("v_add_u32 v10, s30, v10")
    a("v_and_b32 v5, 1, v3")
    a("v_lshl_add_u32 v10, v5, 5, v10")
    a("v_lshrrev_b32 v5, 1, v3")
    a("v_lshl_add_u32 v10, v5, 4, v10")
    for sidx in range(4): a(f"s_mov_b32 s{40+sidx}, {sidx*16*2048}")
    for ip in range(2):
        a(f"s_waitcnt vmcnt(4)")
        for j in range(4):
            o = 16 + (j*2+ip) * 4
            for w_, i in enumerate((2*ip, 2*ip+1)):
                X = g2acc(2, i, j); y = YB + i*8 + 2*j; t = 48 + 4*w_
                a(f"v_lshlrev_b32 v{t}, 16, v{y}")
                a(f"v_and_b32 v{t+1}, 0xffff0000, v{y}")
                a(f"v_lshlrev_b32 v{t+2}, 16, v{y+1}")
                a(f"v_and_b32 v{t+3}, 0xffff0000, v{y+1}")
                a(f"v_pk_add_f32 {vr(X,2)}, {vr(X,2)}, {vr(t,2)}")
                a(f"v_pk_add_f32 {vr(X+2,2)}, {vr(X+2,2)}, {vr(t+2,2)}")
                a(f"v_cvt_pk_bf16_f32 v{o+2*w_}, v{X}, v{X+1}")
                a(f"v_cvt_pk_bf16_f32 v{o+2*w_+1}, v{X+2}, v{X+3}")
            a("s_nop 1")
            a(f"v_permlane16_swap_b32 v{o}, v{o+2}")
            a(f"v_permlane16_swap_b32 v{o+1}, v{o+3}")
            a(f"buffer_store_dwordx4 {vr(o,4)}, v10, s[48:51], s{40+j} offen offset:{ip*64}{['', ' sc1', ' nt', ' sc0 sc1'][env('OUT_SC', 1)]}")
    if env("DIAG", 0):
        a("s_waitcnt vmcnt(0)")
        a("s_memrealtime s[94:95]")
        a("s_waitcnt lgkmcnt(0)")
        if env("DIAG", 0) == 1: a("s_mov_b32 s6, s94")
        a("s_sub_u32 s6, s6, s100")
        a("s_min_u32 s6, s6, 20000")
        a("s_add_u32 s6, s6, s94")
        a.label("DIAG_L")
        a("s_memrealtime s[94:95]")
        a("s_waitcnt lgkmcnt(0)")
        a("s_sub_u32 s7, s94, s6")
        a("s_cmp_lt_i32 s7, 0")
        a("s_cbranch_scc1 DIAG_L")
    stamp(a, 12)
    if PROF["on"]: a("s_waitcnt vmcnt(0)")
    stamp(a, 13)
    stamp_flush(a, 2, 12, 20)
    a("s_endpgm")
    a.label("AO_LOADER")
    srd(a, 8, P['wo'], SZ['wo'])
    loader_ids(a)
    for i in range(4): a(f"v_mov_b32 v{8+i}, v{WOT+i}")
    a("v_mov_b32 v12, 0")
    a("s_lshl_b32 s32, s29, 12")
    a("s_lshl_b32 s31, s22, 18")
    a("s_add_u32 s31, s31, s32")
    a(f"s_add_u32 s31, s31, {WS_O}")
    a("v_lshl_add_u32 v7, v1, 4, s31")
    lds_offs(a)
    a(f"s_mov_b32 s24, {4*M2_SLOT}")
    a("s_lshl_b32 s33, s21, 1")
    a("s_add_u32 s49, s33, 17")
    a("s_add_u32 s33, s33, 3")
    a("s_lshl_b32 s34, s22, 13")
    a(f"s_add_u32 s34, s34, {FL_F3}")
    a("v_lshlrev_b32 v16, 7, v1")
    a("s_lshl_b32 s35, s29, 1")
    a("s_mov_b32 s46, 0x33333333")
    a("s_lshl_b32 s46, s46, s35")
    a("s_and_b32 s44, s46, 0xf0f0f0f0")
    a("s_mov_b32 s45, s44")
    a("s_lshl_b32 s47, s21, 3")
    a("s_lshl_b64 s[40:41], 0xff, s47")
    a("s_mov_b64 s[52:53], 0")
    g = Gate(a, "L2")
    nxt = ["s_and_b32 s47, s33, 15", "s_lshl_b32 s48, s47, 1", "s_add_u32 s48, s48, s28", "s_lshl_b32 s47, s47, 2",
           "s_add_u32 s47, s47, s35", "s_lshl_b64 s[38:39], 3, s47"]
    inc = ["s_add_u32 s33, s33, 2", "s_cmp_eq_u32 s33, s49", "s_addc_u32 s33, s33, 0"]
    def post(ph):
        if ph == 0:
            a("s_lshl_b32 s25, s48, 16")
            g.check()
        else:
            a("s_add_u32 m0, s24, s30")
            a("s_lshl_b32 s26, s48, 13")
    def issue(more=True, mid=None):
        ring_issue(a, 2, (inc + nxt) if more else [], more, NTQ, 12, [7]*4, SC, post, mid)
    for x in nxt: a(x)
    a("s_add_u32 s50, s24, s31")
    a("s_waitcnt vmcnt(0) lgkmcnt(0)")
    flag_store(a, 12, 13, "s36", "1")
    stamp(a, 7)
    a(f"s_sleep {env('L2_SLEEP', 10)}")
    post(0); post(1)
    stamp(a, 8)
    issue()
    stamp(a, 9)
    a("s_barrier")
    issue(mid=lambda: a("s_barrier"))
    issue(mid=lambda: a("s_waitcnt vmcnt(12)\ns_barrier"))
    a("s_mov_b32 s23, 5")
    a(".p2align 6")
    a.label("L2_LOOP")
    for u in range(2):
        a("s_waitcnt vmcnt(8)")
        if u == 0: g.refresh_issue()
        else: g.refresh_take()
        a("s_barrier")
        issue()
    a("s_mov_b32 s44, s46")
    a("s_mov_b32 s45, s46")
    if PROF["on"] and env("PROF_Q", 0):
        a("s_memtime s[94:95]")
        a("s_memrealtime s[96:97]")
        a("s_lshl_b32 s60, s23, 1")
        a("s_add_u32 s60, s60, 42")
        a("s_add_u32 s61, s60, 1")
        a("s_waitcnt lgkmcnt(0)")
        a("s_mov_b32 s62, m0")
        a("s_mov_b32 m0, s60")
        a("v_writelane_b32 v255, s94, m0")
        a("s_mov_b32 m0, s61")
        a("v_writelane_b32 v255, s96, m0")
        a("s_mov_b32 m0, s62")
    a("s_sub_u32 s23, s23, 1")
    a("s_cmp_lg_u32 s23, 0")
    a("s_cbranch_scc1 L2_LOOP")
    a("s_waitcnt vmcnt(8)")
    a("s_barrier")
    issue(more=False)
    a("s_waitcnt vmcnt(8)")
    a("s_barrier")
    a("s_waitcnt vmcnt(0)")
    a("s_barrier")
    g.emit()
    stamp(a, 10)
    a("s_cmp_eq_u32 s2, 128")
    a("s_cbranch_scc0 A_LEND")
    a("s_cmp_eq_u32 s20, 4")
    a("s_cbranch_scc0 A_LEND")
    a("v_lshlrev_b32 v16, 10, v1")
    a(f"s_mov_b32 s28, {FL_F3}")
    a(f"s_mov_b32 s29, {FL_F3 + 65536}")
    poll(a, [(16, "s28", 0), (16, "s29", 0)], 17, "EP")
    a(f"s_mov_b32 s28, {FL_EPOCH}")
    flag_store(a, 12, 13, "s28", "1")
    a.label("A_LEND")
    stamp_flush(a, 3, 12, 20)
    a("s_endpgm")
    for hp in range(2):
        a.label(f"{pfx}_EVB_{hp}")
        a("s_cmp_eq_u32 s23, 5")
        a(f"s_cbranch_scc0 {pfx}_NG_{hp}")
        a("s_lshl_b32 s32, s22, 7")
        a("s_lshl_b32 s33, s56, 5")
        a("s_add_u32 s32, s32, s33")
        a("s_lshl_b32 s33, s32, 3")
        a(f"s_add_u32 s33, s33, {FL_F1C}")
        a("v_and_b32 v14, 1, v1")
        a("v_lshlrev_b32 v14, 7, v14")
        poll(a, [(14, "s33", 0)], 15, "GTP", sleep=4)
        a("s_lshl_b32 s33, s32, 2")
        a(f"s_add_u32 s33, s33, {WS_G}")
        a("v_and_b32 v14, 31, v1")
        a("v_lshlrev_b32 v14, 2, v14")
        a("s_barrier")
        a(f"buffer_load_dword v{VG}, v14, s[12:15], s33 offen{SC}")
        a(f"s_branch {pfx}_EBB_{hp}")
        a.label(f"{pfx}_NG_{hp}")
        a("s_waitcnt vmcnt(0)")
        a("s_barrier")
        a("s_cmp_eq_u32 s23, 13")
        a(f"s_cbranch_scc0 {pfx}_EBB_{hp}")
        if hp == 1: a("s_setprio 3")
        srd(a, 44, P['wo'], SZ['wo'])
        a("s_lshl_b32 s34, s21, 2")
        a("s_lshr_b32 s35, s20, 1")
        a("s_add_u32 s34, s34, s35")
        a("s_lshl_b32 s34, s34, 16")
        a("s_and_b32 s35, s20, 1")
        a("s_lshl_b32 s35, s35, 13")
        a("s_and_b32 s36, s20, 2")
        a("s_lshl_b32 s36, s36, 11")
        a("s_add_u32 s35, s35, s36")
        a(f"s_add_u32 m0, s35, {(2 + hp)*M2_SLOT}")
        a("s_nop 0")
        for i in range(4): a(f"buffer_load_dwordx4 v{WOT+i}, s[44:47], s34 offen offset:{i*1024} lds")
        a(f"s_branch {pfx}_EBB_{hp}")
        def bis(cs):
            if len(cs) == 1:
                acts = plan[hp][cs[0]]
                for act in (acts if isinstance(acts, list) else [acts]): touch(*act)
                a(f"s_branch {pfx}_EBT_{hp}")
                return
            m = len(cs) // 2
            a(f"s_cmp_ge_u32 s23, {cs[m]}")
            a(f"s_cbranch_scc1 {pfx}_T{hp}_{cs[m]}")
            bis(cs[:m])
            a.label(f"{pfx}_T{hp}_{cs[m]}")
            bis(cs[m:])
        a.label(f"{pfx}_EVT_{hp}")
        bis(sorted(plan[hp]))
    a.label(f"{pfx}_EXACT")
    a(f"s_mov_b32 s34, {WS_KV}")
    a("v_mov_b32 v12, 0xff800000")
    a("v_mov_b32 v13, 0xff800000")
    a("s_mov_b32 s23, 64")
    a.label(f"{pfx}_MX")
    a(f"buffer_load_dwordx4 {vr(PA,4)}, v4, s[12:15], s34 offen{SC}")
    a(f"buffer_load_dwordx4 {vr(PA+4,4)}, v4, s[12:15], s34 offen offset:1024{SC}")
    a("s_add_u32 s34, s34, 4096")
    a("s_waitcnt vmcnt(0)")
    a(f"{M32} {vr(SA,16)}, {vr(PA,4)}, {vr(QA,4)}, 0")
    a(f"{M32} {vr(SB,16)}, {vr(PA,4)}, {vr(QB,4)}, 0")
    a(f"{M32} {vr(SA,16)}, {vr(PA+4,4)}, {vr(QA+4,4)}, {vr(SA,16)}")
    a(f"{M32} {vr(SB,16)}, {vr(PA+4,4)}, {vr(QB+4,4)}, {vr(SB,16)}")
    a("s_nop 15")
    for r in range(0, 16, 2): a(f"v_max3_f32 v12, v12, v{SA+r}, v{SA+r+1}")
    for r in range(0, 16, 2): a(f"v_max3_f32 v13, v13, v{SB+r}, v{SB+r+1}")
    a("s_sub_u32 s23, s23, 1")
    a("s_cmp_lg_u32 s23, 0")
    a(f"s_cbranch_scc1 {pfx}_MX")
    a("v_mov_b32 v14, v12")
    a("v_mov_b32 v15, v13")
    a("s_nop 1")
    a("v_permlane32_swap_b32 v12, v14")
    a("v_permlane32_swap_b32 v13, v15")
    a("v_max_f32 v12, v12, v14")
    a("v_max_f32 v13, v13, v15")
    a(f"s_branch {pfx}_FAST")

def gen_mega(a, name):
    kernel_begin(a, name)
    a("s_cmp_ge_u32 s2, 256")
    a("s_cbranch_scc1 MK_END")
    if env("DIAG", 0): a("s_memrealtime s[100:101]")
    a("s_load_dwordx16 s[64:79], s[0:1], 0")
    a("s_load_dwordx8 s[80:87], s[0:1], 64")
    a("s_load_dwordx4 s[88:91], s[0:1], 96")
    stamp_init(a)
    a("v_lshrrev_b32 v2, 6, v0")
    a("v_and_b32 v1, 63, v0")
    a("v_readfirstlane_b32 s20, v2")
    a("v_and_b32 v2, 15, v1")
    a("v_lshrrev_b32 v3, 4, v1")
    a(f"s_and_b32 s{XCD}, s2, 7")
    a(f"s_lshr_b32 s{IDX}, s2, 3")
    if env("PF_CODE", 1):
        a("s_getpc_b64 s[4:5]")
        a.label("MK_PC")
        a(f"s_lshl_b32 s27, s{IDX}, 4")
        a("v_add_u32 v4, s27, v2")
        a("v_lshlrev_b32 v4, 7, v4")
        a("v_min_u32 v4, MK_END-MK_PC, v4")
        a("s_cmp_eq_u32 s20, 7")
        a("s_cbranch_scc0 MK_NPC")
        a("s_mov_b64 exec, 0xffff")
        a("global_load_dword v254, v4, s[4:5]")
        a("s_mov_b64 exec, -1")
        a.label("MK_NPC")
    a(f"s_mov_b32 s27, {FL_EPOCH}")
    a("s_waitcnt lgkmcnt(0)")
    stamp(a, 0)
    a(f"s_load_dword s{TAG}, s[90:91], s27")
    srd(a, 12, P['ws'], WS_SIZE)
    if env("PF_TLB", 0):
        a("s_cmp_eq_u32 s20, 6")
        a("s_cbranch_scc0 MK_NTL")
        srd(a, 8, P['out'], SZ['out'])
        srd(a, 16, P['w2'], SZ['w2'])
        a(f"v_lshlrev_b32 v4, {env('PF_TLB', 0)}, v1")
        a("buffer_load_dword v254, v4, s[12:15], 0 offen nt")
        a("buffer_load_dword v254, v4, s[8:11], 0 offen nt")
        a("buffer_load_dword v254, v4, s[16:19], 0 offen nt")
        a.label("MK_NTL")
    a(f"s_cmp_ge_u32 s{IDX}, 16")
    a(f"s_cbranch_scc1 A_ROLE")
    g_role(a)
    a.label("A_ROLE")
    a(f"s_sub_u32 s{IDX}, s{IDX}, 16")
    a_role(a)
    a.label("MK_END")
    a("s_endpgm")
    return kernel_desc(name, 256)
```

```python
import re

class Asm:
    def __init__(self):
        self.lines = []
    def __call__(self, s):
        for l in s.split("\n"):
            l = l.rstrip()
            if l.strip() == "":
                continue
            self.lines.append(l if (l.startswith(" ") or l.rstrip().endswith(":") or l.startswith(".") or l.startswith(";")) else "    " + l)
    def c(self, s):
        self.lines.append("    ; " + s)
    def label(self, n):
        self.lines.append(n + ":")
    def text(self):
        return "\n".join(self.lines) + "\n"

def vr(b, n=1):
    return f"v{b}" if n == 1 else f"v[{b}:{b+n-1}]"
def sr(b, n=1):
    return f"s{b}" if n == 1 else f"s[{b}:{b+n-1}]"

def interleave(main, side, first=0, last=None, per=None):
    n = len(main)
    if last is None: last = n
    slots = [[] for _ in range(n)]
    m = len(side)
    span = last - first
    for j, s in enumerate(side):
        slots[first + j * span // m].append(s)
    out = []
    for i in range(n):
        out.append(main[i]); out.extend(slots[i])
    return out

_reg = re.compile(r"^(-?)(?:abs\()?\|?([vsa])(?:(\d+)|\[(\d+):(\d+)\])\)?\|?$")
def regs_of(op):
    op = op.strip()
    if op in ("vcc",): return {"vcc"}
    if op in ("exec",): return {"exec"}
    if op == "m0": return {"m0"}
    m = _reg.match(op)
    if not m: return set()
    k = m.group(2)
    if m.group(3) is not None: return {f"{k}{int(m.group(3))}"}
    return {f"{k}{i}" for i in range(int(m.group(4)), int(m.group(5)) + 1)}

TRANS = ("v_exp_", "v_log_", "v_rcp_", "v_rsq_", "v_sqrt_", "v_sin_", "v_cos_")
def parse(line):
    l = line.split(";")[0].strip()
    if not l or l.endswith(":") or l.startswith("."): return None
    parts = l.split(None, 1)
    mn = parts[0]
    ops = []
    if len(parts) > 1:
        depth = 0; cur = ""
        for ch in parts[1]:
            if ch == "[": depth += 1
            if ch == "]": depth -= 1
            if ch == "," and depth == 0: ops.append(cur.strip()); cur = ""
            else: cur += ch
        ops.append(cur.strip())
    mods = ""
    if ops:
        t = ops[-1].split(None, 1)
        ops[-1] = t[0]
        if len(t) > 1: mods = t[1]
    d = dict(mn=mn, ops=ops, mods=mods, w=set(), r=set(), kind="other", text=l)
    if mn.startswith("v_mfma"):
        d["kind"] = "mfma"; d["w"] = regs_of(ops[0]); d["A"] = regs_of(ops[1]); d["B"] = regs_of(ops[2]); d["C"] = regs_of(ops[3])
        d["r"] = d["A"] | d["B"] | d["C"]; d["passes"] = 8 if "32x32" in mn else 4
    elif mn.startswith("v_"):
        d["kind"] = "valu"
        if mn.startswith("v_cmp"):
            d["w"] = regs_of(ops[0]); rs = ops[1:]
            if mn.startswith("v_cmpx"): d["w"] |= {"exec"}
        elif mn.startswith("v_permlane") and "swap" in mn:
            d["w"] = regs_of(ops[0]) | regs_of(ops[1]); rs = ops
        elif "_co_" in mn:
            d["w"] = regs_of(ops[0]) | regs_of(ops[1]); rs = ops[2:]
        else:
            d["w"] = regs_of(ops[0]); rs = ops[1:]
            if mn.startswith("v_fmac") or mn.startswith("v_dot2c") or mn.startswith("v_writelane") or "dpp" in mn or "sdwa" in mn: rs = ops
        for o in rs: d["r"] |= regs_of(o)
        d["trans"] = mn.startswith(TRANS)
        d["dpp"] = "dpp" in mn
    elif mn.startswith("buffer_") or mn.startswith("global_"):
        d["kind"] = "vmem"
        islds = " lds" in (" " + mods) or "load_lds" in mn
        if "load" in mn and not islds:
            d["w"] = regs_of(ops[0]); rs = ops[1:]
        elif "atomic" in mn and "sc0" in mods:
            d["w"] = regs_of(ops[0]); rs = ops
        else:
            rs = ops
        for o in rs: d["r"] |= regs_of(o)
        d["lds"] = islds
        d["widestore"] = ("store" in mn and ("x4" in mn or "x3" in mn))
        if d["widestore"]:
            d["data"] = regs_of(ops[0]) if mn.startswith("buffer_") else regs_of(ops[1])
    elif mn.startswith("ds_"):
        d["kind"] = "ds"
        if "read" in mn or "permute" in mn or "swizzle" in mn or "rtn" in mn:
            d["w"] = regs_of(ops[0]); rs = ops[1:]
        else: rs = ops
        for o in rs: d["r"] |= regs_of(o)
    elif mn.startswith("s_"):
        d["kind"] = "salu"
        if mn in ("s_nop", "s_waitcnt", "s_barrier", "s_endpgm", "s_sleep", "s_setprio") or mn.startswith("s_cbranch") or mn == "s_branch" or mn.startswith("s_cmp"):
            for o in ops: d["r"] |= regs_of(o)
        else:
            d["w"] = regs_of(ops[0]) if ops else set()
            for o in ops[1:]: d["r"] |= regs_of(o)
            if "saveexec" in mn: d["w"] |= {"exec"}
    return d

def states(d):
    if d["mn"] == "s_nop": return int(d["ops"][0], 0) + 1
    return 1

def check_seq(seq, where=""):
    probs = []
    for i, c in enumerate(seq):
        dist = 0
        for j in range(i - 1, max(-1, i - 24), -1):
            p = seq[j]
            need = 0; why = ""
            vw = {x for x in p["w"] if x[0] == "v" and x != "vcc"}
            sw = {x for x in p["w"] if x[0] == "s" or x == "vcc"}
            if p["kind"] == "valu":
                if c["kind"] == "mfma" and vw & c["r"]: need, why = 2, "valu->mfma src"
                if c["kind"] == "mfma" and "exec" in p["w"]: need, why = 4, "exec->mfma"
                if p.get("trans") and c["kind"] == "valu" and not c.get("trans") and vw & c["r"]: need, why = max(need, 1), "trans->valu"
                if c["kind"] == "valu" and c["mn"].startswith("v_permlane") and vw & c["r"]: need, why = 2, "valu->permlane"
                if c["kind"] == "valu" and c.get("dpp") and vw & c["r"]: need, why = 2, "valu->dpp"
                if c["kind"] == "valu" and c.get("dpp") and "exec" in p["w"]: need, why = 5, "exec->dpp"
                if c["kind"] == "valu" and (c["mn"].startswith("v_readlane") or c["mn"].startswith("v_readfirstlane")) and vw & c["r"]: need, why = max(need, 1), "valu->readlane"
                if c["kind"] == "vmem" and sw & c["r"]: need, why = 5, "valu sgpr->vmem"
                if c["kind"] == "valu" and sw & c["r"]: need, why = max(need, 2), "valu sgpr->valu"
                if c["kind"] == "valu" and "vcc" in sw and ("cndmask" in c["mn"]) and "vcc" in c["r"]: need, why = max(need, 2), "vcc->cndmask"
                if "sdwa" in p["mn"] and c["kind"] == "valu" and vw & (c["r"] | c["w"]): need, why = max(need, 1), "sdwa->valu"
            if p["kind"] == "mfma":
                ps = p["passes"]
                big = 12 if ps == 8 else 8
                if c["kind"] == "mfma":
                    if p["w"] & (c["A"] | c["B"]): need, why = big, "mfma D->mfma A/B"
                    elif p["w"] & c["C"]:
                        if not (p["w"] == c["C"] and ps == c["passes"]): need, why = (10 if ps == 8 else 6), "mfma D->mfma C overlap"
                    elif p["w"] & c["w"]:
                        need, why = (10 if ps == 8 else 6), "mfma D->mfma D WAW(conservative)"
                elif c["kind"] in ("valu", "vmem", "ds"):
                    if p["w"] & (c["r"] | c["w"]): need, why = big, "mfma D->valu/mem"
                    elif c["kind"] == "valu" and p["C"] & c["w"]: need, why = (7 if ps == 8 else 3), "mfma C WAR"
            if p["kind"] == "salu" and "m0" in p["w"] and c["kind"] == "vmem" and c.get("lds"): need, why = 1, "m0->dma"
            if p["kind"] == "vmem" and p.get("widestore") and p["data"] & c["w"]:
                need, why = (2 if c["kind"] == "valu" else 1), "store data WAR"
            if need > dist:
                probs.append(f"{where}: [{why}] need {need} have {dist}: '{p['text']}' -> '{c['text']}'")
            dist += states(p)
            if dist >= 20: break
    return probs

def check_text(text):
    lines = text.split("\n")
    ins = []; labels = {}
    for l in lines:
        s = l.split(";")[0].strip()
        if s.endswith(":") and not s.startswith("."):
            labels[s[:-1]] = len(ins); continue
        d = parse(l)
        if d and not d["mn"].startswith("."): ins.append(d)
    probs = []
    seg = []
    for d in ins:
        seg.append(d)
        if d["mn"] in ("s_branch", "s_endpgm"):
            probs += check_seq(seg, "linear"); seg = []
    probs += check_seq(seg, "linear")
    for i, d in enumerate(ins):
        if d["mn"].startswith("s_cbranch") or d["mn"] == "s_branch":
            t = labels.get(d["ops"][0])
            if t is None: continue
            pre = ins[max(0, i - 24):i + 1]
            for k in range(len(pre) - 2, -1, -1):
                if pre[k]["mn"] in ("s_branch", "s_endpgm"): pre = pre[k + 1:]; break
            post = []
            for x in ins[t:t + 24]:
                post.append(x)
                if x["mn"] in ("s_branch", "s_endpgm"): break
            probs += check_seq(pre + post, f"edge->{d['ops'][0]}")
    return sorted(set(probs))

_VOP3_ONLY = ("v_mfma", "v_cvt_pk_bf16", "v_pk_", "v_fma_f32", "v_lshl_add", "v_add3", "v_max3", "v_mul_lo", "v_mul_hi",
              "v_perm_b32", "v_dot2_f32", "v_readlane", "v_writelane", "v_mad_", "v_bfe", "v_and_or", "v_lshl_or", "v_add_lshl")
def _is_inline(tok):
    try:
        v = int(tok, 0); return -16 <= v <= 64
    except ValueError:
        pass
    return tok in ("0.5", "-0.5", "1.0", "-1.0", "2.0", "-2.0", "4.0", "-4.0")
def isize(line):
    d = parse(line)
    if d is None: return 0
    mn = d["mn"]
    if mn.startswith(("ds_", "buffer_", "global_", "s_load", "s_memtime", "s_memrealtime")): return 8
    if mn.startswith(_VOP3_ONLY) or mn.endswith("_e64") or "dpp" in mn or "sdwa" in mn: return 8
    if mn in ("s_nop", "s_waitcnt", "s_barrier", "s_sleep", "s_setprio", "s_endpgm", "s_movk_i32") or mn.startswith("s_cbranch") or mn == "s_branch": return 4
    lit = False
    for o in d["ops"][(0 if mn.startswith(("s_cmp", "s_bitcmp")) else 1):]:
        if re.match(r"^-?(0x[0-9a-fA-F]+|\d+)$", o) and not _is_inline(o): lit = True
        if re.match(r"^[A-Z_0-9]+-[A-Z_0-9]+$", o): lit = True
    if mn.startswith("v_cmp") and not d["ops"][0] == "vcc": return 8
    return 8 if lit else 4
def align8(lines):
    out = list(lines); off = 0; lastv = None
    for i, l in enumerate(out):
        sz = isize(l)
        if sz == 0: continue
        if sz == 8:
            if off % 8 and lastv is not None:
                t = out[lastv].strip().split(None, 1)
                out[lastv] = "    " + t[0] + "_e64 " + t[1]
                off += 4
            lastv = None
        else:
            mn = l.strip().split()[0]
            if mn.startswith("v_") and not mn.startswith(("v_permlane", "v_readfirstlane")): lastv = i
        off += sz
    return out

def align_all(lines, thresh=5):
    out = []; off = 0; lastv = None; after8 = 0
    n = len(lines)
    sizes = [isize(l) if not l.strip().startswith(".") else 0 for l in lines]
    for i, l in enumerate(lines):
        st = l.strip()
        if st.startswith(".p2align"):
            off = 0; lastv = None; out.append(l); after8 = len(out); continue
        sz = sizes[i]
        if sz == 0:
            out.append(l)
            if st.endswith(":"): after8 = len(out)
            continue
        if sz == 8:
            if off % 8:
                if lastv is not None:
                    t = out[lastv].strip().split(None, 1)
                    out[lastv] = "    " + t[0] + "_e64 " + t[1]
                    off += 4
                else:
                    k = 0; j = i
                    while j < n and sizes[j] != 4 and not lines[j].strip().startswith(".p2align"):
                        if sizes[j] == 8: k += 1
                        j += 1
                    if k >= thresh:
                        out.insert(after8, "    s_nop 0")
                        off += 4
            lastv = None
            out.append(l); after8 = len(out)
        else:
            mn = st.split()[0]
            out.append(l)
            if mn.startswith("v_") and not mn.startswith(("v_permlane", "v_readfirstlane", "v_nop")): lastv = len(out) - 1
            if mn.startswith("s_cbranch") or mn == "s_branch" or mn == "s_getpc_b64": after8 = len(out)
        off += sz
    return out
```

```python
import sys
sys.path.insert(0, "gen")
from common import *
from k1 import gen_k1, K1_LDS
from gemm import gen_mlp1, gen_mlp2
from attn import gen_attn

HDR = open("gated_mix__grouped_kv_mqa__mixer_token_mlp__prompt.s.ref").read().split("; Override launch")[0]

def build_v1():
    a = Asm()
    launches = [("prep_kernel", 256, 512, K1_LDS), ("attn_kernel", 128, 512, 163840),
                ("mlp1_kernel", 128, 512, 147456), ("mlp2_kernel", 128, 512, 163840)]
    descs = [gen_k1(a), gen_attn(a), gen_mlp1(a), gen_mlp2(a)]
    return finish(a, launches, descs)

def build_mega():
    import os, importlib
    gen_mega = importlib.import_module(os.environ.get("MEGA_FILE", "mega.py")[:-3]).gen_mega
    a = Asm()
    name = "gated_mix__grouped_kv_mqa__mixer_token_mlp__prompt_kernel"
    descs = [gen_mega(a, name)]
    return finish(a, [(name, 256, 512, 163840)], descs)

def finish(a, launches, descs):
    import os
    if int(os.environ.get("ALIGN", 1)): a.lines = align_all(a.lines, int(os.environ.get("ALIGN_T", 4)))
    body = a.text()
    probs = check_text(body)
    for p in probs: print("HAZARD", p)
    t = HDR
    import os
    for k, g, b, l in launches:
        if len(launches) == 1 and os.environ.get("SINGLE"):
            t += f"; @launch grid=({g},1,1) block=({b},1,1) lds={l}\n"
        else:
            t += f"; @launch kernel={k} grid=({g},1,1) block=({b},1,1) lds={l}\n"
    t += '.amdgcn_target "amdgcn-amd-amdhsa--gfx950"\n.text\n' + body
    t += '.section .rodata,"a"\n'
    for d in descs: t += ".p2align 6\n" + d
    return t

if __name__ == "__main__":
    which = sys.argv[1] if len(sys.argv) > 1 else "v1"
    out = sys.argv[2] if len(sys.argv) > 2 else "gated_mix__grouped_kv_mqa__mixer_token_mlp__prompt.s"
    if len(sys.argv) > 3 and sys.argv[3] in ("prof", "lite"): PROF["on"] = True
    if len(sys.argv) > 3 and sys.argv[3] == "lite": PROF["lite"] = True
    t = globals()["build_" + which]()
    open(out, "w").write(t)
    print("wrote", out, len(t), "bytes")
```
